```python
import torch

def _softmax(x, axis=-1):
    return torch.softmax(x, dim=axis)
def _gelu(x):
    return torch.nn.functional.gelu(x, approximate="tanh")
def _silu(x):
    return torch.nn.functional.silu(x)
def _sigmoid(x):
    return torch.sigmoid(x)
def _layernorm(x, axis=-1, eps=1e-5):
    m = x.mean(dim=axis, keepdim=True)
    v = x.var(dim=axis, keepdim=True, unbiased=False)
    return (x - m) / torch.sqrt(v + eps)
def _scatter_add(tgt, idx, src, axis=0):
    return tgt.clone().index_add_(axis, idx, src)
def _segment_sum(src, seg, n):
    out = torch.zeros((n,) + src.shape[1:], dtype=src.dtype)
    return out.index_add_(0, seg, src)
def _pad(x, pw):
    flat = tuple(v for pair in reversed(pw) for v in pair)
    return torch.nn.functional.pad(x, flat)

kernel_name = 'standalone__mha_softmax__sampling'

def setup_inputs():

    _w = (lambda a: (lambda t: t.to(torch.bfloat16) if t.is_floating_point() else t)(torch.as_tensor(a)))
    B, H, Sq, Sk, D = 16, 32, 1, 2048, 128
    return {
        "q": _w((lambda *s: torch.randn(*s, dtype=torch.bfloat16) * 0.8)(B, H, Sq, D)),
        "k": _w((lambda *s: torch.randn(*s, dtype=torch.bfloat16) * 0.8)(B, H, Sk, D)),
        "v": _w((lambda *s: torch.randn(*s, dtype=torch.bfloat16) * 0.05)(B, H, Sk, D)),
    }

def reference(q, k, v):
    scale = q.shape[-1] ** -0.5
    scores = torch.einsum("bhqd,bhkd->bhqk", q, k) * scale
    p = _softmax(scores, axis=-1)
    return torch.einsum("bhqk,bhkd->bhqd", p, v)
```

```python
import sys, argparse, struct

def f2u(x):
    return struct.unpack('<I', struct.pack('<f', x))[0]

HEADER = open('standalone__mha_softmax__sampling.s.ref').read().split('; Override launch')[0]

def gen(waves=8, nb=2, policy='nt', interleave=True, vgpr_min=0, name='standalone__mha_softmax__sampling_kernel'):
    L = []
    A = L.append
    NG = 128 // waves
    assert NG % nb == 0
    pol = (' ' + policy) if policy else ''
    vOff = 1
    vq = 4
    vacc = 8
    vm, vl = 16, 17
    vt = 18
    vw, vx, vmn, val, vp = 22, 23, 24, 25, 26
    vtmp = 28
    vbuf = 36
    def KB(b, i): return vbuf + b * 32 + i * 4
    def VB(b, i): return vbuf + b * 32 + 16 + i * 4
    nv = vbuf + nb * 32
    nv_alloc = max(nv, vgpr_min)
    lds = waves * 512 + waves * 8 + 64
    A(HEADER.rstrip('\n'))
    A(f'; @launch grid=(512,1,1) block=({waves*64},1,1) lds={lds}')
    A('.amdgcn_target "amdgcn-amd-amdhsa--gfx950"')
    A('.text')
    A(f'.globl {name}')
    A('.p2align 8')
    A(f'.type {name},@function')
    A(f'{name}:')
    A('    s_cmp_ge_u32 s2, 512')
    A('    s_cbranch_scc1 L_end')
    A('    s_load_dwordx4 s[4:7], s[0:1], 0       ; q, k')
    A('    s_load_dwordx4 s[8:11], s[0:1], 16     ; v, out')
    A('    v_lshrrev_b32 v2, 6, v0')
    A('    v_and_b32 v3, 63, v0                   ; lane')
    A('    v_readfirstlane_b32 s3, v2')
    if interleave:
        A(f'    v_lshlrev_b32 v{vOff}, 4, v3')
        A(f'    v_lshl_add_u32 v{vOff}, v2, 12, v{vOff}')
        gstride = waves * 4096
    else:
        A(f'    v_lshlrev_b32 v{vOff}, 4, v3')
        gstride = 4096
    A('    v_and_b32 v2, 15, v0')
    A('    v_lshlrev_b32 v2, 4, v2                ; (lane%16)*16 : q offset')
    A('    s_lshl_b32 s24, s2, 19')
    A('    s_lshl_b32 s25, s2, 8                  ; head*256')
    if not interleave:
        A(f'    s_mul_i32 s26, s3, {NG*4096}')
        A('    s_add_u32 s24, s24, s26')
    A('    s_waitcnt lgkmcnt(0)')
    nrec = 524288 if interleave else NG * 4096
    A('    s_add_u32 s20, s4, s25')
    A('    s_addc_u32 s21, s5, 0')
    A('    s_and_b32 s21, s21, 0xffff')
    A('    s_mov_b32 s22, 256')
    A('    s_mov_b32 s23, 0x00020000')
    A('    s_add_u32 s12, s6, s24')
    A('    s_addc_u32 s13, s7, 0')
    A('    s_and_b32 s13, s13, 0xffff')
    A(f'    s_mov_b32 s14, {nrec}')
    A('    s_mov_b32 s15, 0x00020000')
    A('    s_add_u32 s16, s8, s24')
    A('    s_addc_u32 s17, s9, 0')
    A('    s_and_b32 s17, s17, 0xffff')
    A(f'    s_mov_b32 s18, {nrec}')
    A('    s_mov_b32 s19, 0x00020000')
    A(f'    buffer_load_dwordx4 v[{vq}:{vq+3}], v2, s[20:23], 0 offen')
    A('    s_mov_b32 s32, 0')
    def loadK(b):
        for i in range(4):
            A(f'    buffer_load_dwordx4 v[{KB(b,i)}:{KB(b,i)+3}], v{vOff}, s[12:15], s32 offen offset:{i*1024}{pol}')
    def loadV(b):
        for i in range(4):
            A(f'    buffer_load_dwordx4 v[{VB(b,i)}:{VB(b,i)+3}], v{vOff}, s[16:19], s32 offen offset:{i*1024}{pol}')
    for b in range(nb):
        loadK(b); loadV(b)
        A(f'    s_add_u32 s32, s32, {gstride}')
    A('    s_add_u32 s28, s10, s25')
    A('    s_addc_u32 s29, s11, 0')
    A('    s_and_b32 s29, s29, 0xffff')
    A('    s_mov_b32 s30, 256')
    A('    s_mov_b32 s31, 0x00020000')
    c = (128 ** -0.5) * 1.4426950408889634
    A(f'    s_mov_b32 s33, 0x{f2u(c):08x}          ; scale*log2(e)')
    A('    s_mov_b32 s34, 0xffff0000')
    A(f'    s_mov_b32 s35, {NG // nb}')
    for e in range(8):
        A(f'    v_mov_b32 v{vacc+e}, 0')
    A(f'    v_mov_b32 v{vm}, 0xff800000')
    A(f'    v_mov_b32 v{vl}, 0')
    DPP = ' row_mask:0xf bank_mask:0xf'
    W = 4 * (2 * nb - 1)
    A('L_loop:')
    for b in range(nb):
        A(f'    s_waitcnt vmcnt({W})')
        for i in range(4):
            A(f'    v_dot2_f32_bf16 v{vt+i}, v{KB(b,i)}, v{vq}, 0')
        for w in range(1, 4):
            for i in range(4):
                A(f'    v_dot2_f32_bf16 v{vt+i}, v{KB(b,i)+w}, v{vq+w}, v{vt+i}')
        def lk(i):
            A(f'    buffer_load_dwordx4 v[{KB(b,i)}:{KB(b,i)+3}], v{vOff}, s[12:15], s32 offen offset:{i*1024}{pol}')
        lk(0)
        A(f'    v_add_f32_dpp v{vt}, v{vt}, v{vt} row_ror:8 row_mask:0xf bank_mask:0x3')
        A(f'    v_add_f32_dpp v{vt+2}, v{vt+2}, v{vt+2} row_ror:8 row_mask:0xf bank_mask:0x3')
        lk(1)
        A(f'    v_add_f32_dpp v{vt}, v{vt+1}, v{vt+1} row_ror:8 row_mask:0xf bank_mask:0xc')
        A(f'    v_add_f32_dpp v{vt+2}, v{vt+3}, v{vt+3} row_ror:8 row_mask:0xf bank_mask:0xc')
        lk(2)
        A(f'    v_add_f32_dpp v{vw}, v{vt}, v{vt} row_ror:12 row_mask:0xf bank_mask:0x5')
        lk(3)
        A('    s_nop 0')
        A(f'    v_add_f32_dpp v{vw}, v{vt+2}, v{vt+2} row_ror:4 row_mask:0xf bank_mask:0xa')
        A('    s_nop 1')
        A(f'    v_add_f32_dpp v{vw}, v{vw}, v{vw} quad_perm:[1,0,3,2]{DPP}')
        A('    s_nop 1')
        A(f'    v_add_f32_dpp v{vw}, v{vw}, v{vw} quad_perm:[2,3,0,1]{DPP}')
        A(f'    v_mul_f32 v{vw}, s33, v{vw}')
        A('    s_nop 1')
        A(f'    v_max_f32_dpp v{vx}, v{vw}, v{vw} row_ror:4{DPP}')
        A('    s_nop 1')
        A(f'    v_max_f32_dpp v{vx}, v{vx}, v{vx} row_ror:8{DPP}')
        A(f'    v_max_f32 v{vmn}, v{vm}, v{vx}')
        A(f'    v_sub_f32 v{val}, v{vm}, v{vmn}')
        A(f'    v_sub_f32 v{vp}, v{vw}, v{vmn}')
        A(f'    v_exp_f32 v{val}, v{val}')
        A(f'    v_exp_f32 v{vp}, v{vp}')
        A(f'    v_mov_b32 v{vm}, v{vmn}')
        A(f'    v_fma_f32 v{vl}, v{vl}, v{val}, v{vp}')
        for e in range(8):
            A(f'    v_mul_f32 v{vacc+e}, v{val}, v{vacc+e}')
        A(f'    s_waitcnt vmcnt({W})')
        src_lane = [0, 8, 4, 12]
        for i in range(4):
            for w in range(4):
                A(f'    v_lshlrev_b32 v{vtmp+2*w}, 16, v{VB(b,i)+w}')
                A(f'    v_and_b32 v{vtmp+2*w+1}, s34, v{VB(b,i)+w}')
            for e in range(8):
                A(f'    v_fmac_f32_dpp v{vacc+e}, v{vp}, v{vtmp+e} row_newbcast:{src_lane[i]}{DPP}')
        loadV(b)
        A(f'    s_add_u32 s32, s32, {gstride}')
    A('    s_sub_u32 s35, s35, 1')
    A('    s_cmp_lg_u32 s35, 0')
    A('    s_cbranch_scc1 L_loop')
    A(f'    v_add_f32_dpp v{vl}, v{vl}, v{vl} row_ror:4{DPP}')
    A(f'    v_mov_b32 v{vx}, v{vm}')
    A('    s_nop 0')
    A(f'    v_add_f32_dpp v{vl}, v{vl}, v{vl} row_ror:8{DPP}')
    A(f'    v_mov_b32 v{vw}, v{vm}')
    A('    s_nop 1')
    A(f'    v_permlane32_swap_b32 v{vx}, v{vw}')
    A('    s_nop 1')
    A(f'    v_max_f32 v{vx}, v{vx}, v{vw}')
    A(f'    v_mov_b32 v{vw}, v{vx}')
    A('    s_nop 1')
    A(f'    v_permlane16_swap_b32 v{vx}, v{vw}')
    A('    s_nop 1')
    A(f'    v_max_f32 v{vmn}, v{vx}, v{vw}')
    A(f'    v_sub_f32 v{val}, v{vm}, v{vmn}')
    A(f'    v_exp_f32 v{val}, v{val}')
    A('    s_nop 0')
    A(f'    v_mul_f32 v{vl}, v{val}, v{vl}')
    for e in range(8):
        A(f'    v_mul_f32 v{vacc+e}, v{val}, v{vacc+e}')
    A(f'    v_mov_b32 v{vx}, v{vl}')
    A('    s_nop 1')
    for k in range(4):
        A(f'    v_permlane32_swap_b32 v{vacc+k}, v{vacc+k+4}')
    A(f'    v_permlane32_swap_b32 v{vl}, v{vx}')
    A('    s_nop 1')
    for k in range(4):
        A(f'    v_add_f32 v{vacc+k}, v{vacc+k}, v{vacc+k+4}')
    A(f'    v_add_f32 v{vl}, v{vl}, v{vx}')
    A(f'    v_mov_b32 v{vx}, v{vl}')
    A('    s_nop 1')
    A(f'    v_permlane16_swap_b32 v{vacc}, v{vacc+2}')
    A(f'    v_permlane16_swap_b32 v{vacc+1}, v{vacc+3}')
    A(f'    v_permlane16_swap_b32 v{vl}, v{vx}')
    A('    s_nop 1')
    A(f'    v_add_f32 v{vacc}, v{vacc}, v{vacc+2}')
    A(f'    v_add_f32 v{vacc+1}, v{vacc+1}, v{vacc+3}')
    A(f'    v_add_f32 v{vmn+1}, v{vl}, v{vx}')
    A('    v_lshlrev_b32 v2, 3, v0                ; tid*8')
    A(f'    ds_write_b64 v2, v[{vacc}:{vacc+1}]')
    A('    s_lshl_b32 s36, s3, 3')
    A(f'    s_add_u32 s36, s36, {waves*512}')
    A('    v_mov_b32 v2, s36')
    A(f'    ds_write_b64 v2, v[{vmn}:{vmn+1}]')
    A('    s_waitcnt lgkmcnt(0)')
    A('    s_barrier')
    A('    s_cmp_lg_u32 s3, 0')
    A('    s_cbranch_scc1 L_end')
    A('    v_lshlrev_b32 v2, 3, v0')
    A(f'    v_mov_b32 v3, {waves*512}')
    ml = vbuf
    ac = vbuf + 2 * waves
    A('    s_waitcnt vmcnt(0)')
    for w2 in range(waves // 2):
        A(f'    ds_read_b128 v[{ml+4*w2}:{ml+4*w2+3}], v3 offset:{16*w2}')
    for w in range(waves):
        A(f'    ds_read_b64 v[{ac+2*w}:{ac+2*w+1}], v2 offset:{512*w}')
    A(f'    s_waitcnt lgkmcnt({waves})')
    A(f'    v_max_f32 v{vmn}, v{ml}, v{ml+2}')
    for w in range(2, waves):
        A(f'    v_max_f32 v{vmn}, v{vmn}, v{ml+2*w}')
    for w in range(waves):
        A(f'    v_sub_f32 v{ml+2*w}, v{ml+2*w}, v{vmn}')
    for w in range(waves):
        A(f'    v_exp_f32 v{ml+2*w}, v{ml+2*w}')
    A('    s_nop 0')
    A(f'    v_mul_f32 v{vl}, v{ml}, v{ml+1}')
    for w in range(1, waves):
        A(f'    v_fmac_f32 v{vl}, v{ml+2*w}, v{ml+2*w+1}')
    A('    s_waitcnt lgkmcnt(0)')
    A(f'    v_mul_f32 v{vacc}, v{ml}, v{ac}')
    A(f'    v_mul_f32 v{vacc+1}, v{ml}, v{ac+1}')
    for w in range(1, waves):
        A(f'    v_fmac_f32 v{vacc}, v{ml+2*w}, v{ac+2*w}')
        A(f'    v_fmac_f32 v{vacc+1}, v{ml+2*w}, v{ac+2*w+1}')
    A(f'    v_rcp_f32 v{vl}, v{vl}')
    A('    v_and_b32 v2, 15, v0')
    A('    v_lshlrev_b32 v2, 4, v2')
    A('    v_lshrrev_b32 v3, 4, v0')
    A('    v_lshl_add_u32 v2, v3, 2, v2')
    A(f'    v_mul_f32 v{vacc}, v{vacc}, v{vl}')
    A(f'    v_mul_f32 v{vacc+1}, v{vacc+1}, v{vl}')
    A(f'    v_cvt_pk_bf16_f32 v{vacc}, v{vacc}, v{vacc+1}')
    A(f'    buffer_store_dword v{vacc}, v2, s[28:31], 0 offen')
    A('L_end:')
    A('    s_endpgm')
    A('.section .rodata,"a"')
    A('.p2align 6')
    A(f'.amdhsa_kernel {name}')
    A(f'  .amdhsa_next_free_vgpr {nv_alloc}')
    A('  .amdhsa_next_free_sgpr 48')
    A(f'  .amdhsa_accum_offset {(nv_alloc + 3) // 4 * 4}')
    A('  .amdhsa_group_segment_fixed_size 0')
    A('  .amdhsa_kernarg_size 48')
    A('  .amdhsa_user_sgpr_count 2')
    A('  .amdhsa_user_sgpr_kernarg_segment_ptr 1')
    A('  .amdhsa_system_sgpr_workgroup_id_x 1')
    A('  .amdhsa_float_denorm_mode_32 3')
    A('.end_amdhsa_kernel')
    return '\n'.join(L) + '\n'

if __name__ == '__main__':
    ap = argparse.ArgumentParser()
    ap.add_argument('out')
    ap.add_argument('--waves', type=int, default=8)
    ap.add_argument('--nb', type=int, default=2)
    ap.add_argument('--policy', default='nt')
    ap.add_argument('--contig', action='store_true')
    ap.add_argument('--vgpr', type=int, default=0)
    a = ap.parse_args()
    open(a.out, 'w').write(gen(a.waves, a.nb, a.policy, not a.contig, a.vgpr))
```

```python
import sys, argparse, struct

def f2u(x):
    return struct.unpack('<I', struct.pack('<f', x))[0]

HEADER = open('standalone__mha_softmax__sampling.s.ref').read().split('; Override launch')[0]
NAME = 'standalone__mha_softmax__sampling_kernel'

def gen(G=256, W=4, NB=2, cap=6, procap=None, policy='nt', diag=False, sampler=False, codepf=False, rot=0, tailcap=None, tailsteps=0):
    L = []
    A = L.append
    HPW = 512 // G
    SPH = 128 // W
    STEP = W * 4096
    STEPLOG = STEP.bit_length() - 1
    assert SPH % NB == 0
    if procap is None: procap = cap
    SL = W * 512 + 128
    MLO = W * 512
    CB = HPW * SL
    CNT, PROG = CB, CB + 16
    lds = (81920 + 1024) if G == 256 else 65536
    WS_DIAG = 8 << 20
    pol = (' ' + policy) if policy else ''
    DPP = ' row_mask:0xf bank_mask:0xf'
    vOff, vQo, vL8 = 1, 2, 3
    vacc, vm, vl, vt, vw, vx, vmn, val, vp, vone = 8, 16, 17, 18, 22, 23, 24, 25, 26, 27
    vtmp = 28
    vzero, vOut = 36, 37
    vq = 40
    vml = 48
    vdat = vml + 2 * W
    vbuf = (vdat + 2 * W + 3) // 4 * 4
    def KB(b, i): return vbuf + b * 32 + i * 4
    def VB(b, i): return vbuf + b * 32 + 16 + i * 4
    nv = vbuf + NB * 32
    NW = W + (1 if sampler else 0)
    sKo, sCnt, sHead = 44, 45, 46
    A(HEADER.rstrip('\n'))
    A(f'; @launch grid=({G},1,1) block=({NW*64},1,1) lds={lds}')
    A('.amdgcn_target "amdgcn-amd-amdhsa--gfx950"')
    A('.text')
    A(f'.globl {NAME}')
    A('.p2align 8')
    A(f'.type {NAME},@function')
    A(f'{NAME}:')
    if diag:
        A('    s_memrealtime s[70:71]')
    A('    s_load_dwordx4 s[4:7], s[0:1], 0        ; q, k')
    A('    s_load_dwordx4 s[8:11], s[0:1], 16      ; v, out')
    if diag:
        A('    s_load_dwordx2 s[38:39], s[0:1], 40     ; ws')
    A(f'    s_cmp_ge_u32 s2, {G}')
    A('    s_cbranch_scc1 L_end')
    A('    v_lshrrev_b32 v4, 6, v0')
    A('    v_and_b32 v5, 63, v0                    ; lane')
    A('    v_readfirstlane_b32 s3, v4')
    A(f'    v_lshlrev_b32 v{vOff}, 4, v5')
    A(f'    v_lshl_add_u32 v{vOff}, v4, 12, v{vOff}')
    A(f'    v_and_b32 v{vQo}, 15, v0')
    A(f'    v_lshlrev_b32 v{vQo}, 4, v{vQo}                ; (lane%16)*16')
    RB = 19 + (HPW - 1)
    A(f'    s_lshl_b32 s50, s2, {RB}')
    A(f'    s_lshl_b32 s51, s2, {8 + HPW - 1}')
    A(f'    s_mov_b32 s14, {1 << RB}')
    A('    s_mov_b32 s15, 0x00020000')
    A(f'    s_mov_b32 s18, {1 << RB}')
    A('    s_mov_b32 s19, 0x00020000')
    A(f'    s_mov_b32 s22, {256 * HPW}')
    A('    s_mov_b32 s23, 0x00020000')
    A(f'    s_mov_b32 s{sKo}, 0')
    A('    s_waitcnt lgkmcnt(0)')
    A('    s_add_u32 s12, s6, s50')
    A('    s_addc_u32 s13, s7, 0')
    A('    s_and_b32 s13, s13, 0xffff')
    A('    s_add_u32 s16, s8, s50')
    A('    s_addc_u32 s17, s9, 0')
    A('    s_and_b32 s17, s17, 0xffff')
    if sampler:
        A(f'    s_cmp_eq_u32 s3, {W}')
        A('    s_cbranch_scc1 L_skip_first')
    curcap = [procap]
    ncw = [0]
    inloop = [False]
    def capwait():
        if not curcap[0]: return
        if inloop[0] and tailsteps:
            k = ncw[0]; ncw[0] += 1
            A(f'    s_cbranch_vccnz L_cw{k}')
            A(f'    s_waitcnt vmcnt({curcap[0]-1})')
            A(f'L_cw{k}:')
        else:
            A(f'    s_waitcnt vmcnt({curcap[0]-1})')
    def lk(b, i):
        capwait()
        A(f'    buffer_load_dwordx4 v[{KB(b,i)}:{KB(b,i)+3}], v{vOff}, s[12:15], s{sKo} offen offset:{i*1024}{pol}')
    def lv(b, i):
        capwait()
        A(f'    buffer_load_dwordx4 v[{VB(b,i)}:{VB(b,i)+3}], v{vOff}, s[16:19], s{sKo} offen offset:{i*1024}{pol}')
    curcap[0] = 0
    for i in range(4): lk(0, i)
    for i in range(2): lv(0, i)
    if sampler: A('L_skip_first:')
    A('    s_add_u32 s20, s4, s51')
    A('    s_addc_u32 s21, s5, 0')
    A('    s_and_b32 s21, s21, 0xffff')
    for h in range(HPW):
        A(f'    buffer_load_dwordx4 v[{vq+4*h}:{vq+4*h+3}], v{vQo}, s[20:23], 0 offen offset:{256*h}')
    if codepf:
        A('    s_getpc_b64 s[62:63]')
        A('L_pfbase:')
        A('    v_lshlrev_b32 v6, 6, v0')
        A('    v_cmp_gt_u32 vcc, L_code_end-L_pfbase, v6')
        A('    s_and_saveexec_b64 s[64:65], vcc')
        A('    s_cbranch_execz L_nopf')
        A('    global_load_dword v7, v6, s[62:63]')
        A('L_nopf:')
        A('    s_mov_b64 exec, s[64:65]')
    A('    s_add_u32 s24, s10, s51')
    A('    s_addc_u32 s25, s11, 0')
    A('    s_and_b32 s25, s25, 0xffff')
    A(f'    s_mov_b32 s26, {256 * HPW}')
    A('    s_mov_b32 s27, 0x00020000')
    if diag:
        A('    s_mov_b32 s28, s38')
        A('    s_and_b32 s29, s39, 0xffff')
        A(f'    s_mov_b32 s30, {WS_DIAG + 65536 + (2 << 20)}')
        A('    s_mov_b32 s31, 0x00020000')
    c = (128 ** -0.5) * 1.4426950408889634
    A(f'    s_mov_b32 s33, 0x{f2u(c):08x}           ; scale*log2(e)')
    A('    s_mov_b32 s34, 0xffff0000')
    A(f'    v_lshlrev_b32 v{vL8}, 3, v5                ; lane*8')
    A(f'    v_lshrrev_b32 v6, 4, v5')
    A(f'    v_lshl_add_u32 v{vOut}, v6, 2, v{vQo}')
    A(f'    v_mov_b32 v{vone}, 1')
    A(f'    v_mov_b32 v{vzero}, 0')
    A(f'    v_mov_b32 v{vzero+2}, 0')
    A(f'    v_mov_b32 v{vzero+3}, 0')
    A(f'    ds_write_b64 v{vzero}, v[{vzero+2}:{vzero+3}] offset:{CNT}')
    A(f'    ds_write_b32 v{vzero}, v{vzero} offset:{PROG}')
    for e in range(8):
        A(f'    v_mov_b32 v{vacc+e}, 0')
    A(f'    v_mov_b32 v{vm}, 0xff800000')
    A(f'    v_mov_b32 v{vl}, 0')
    A(f'    s_mov_b32 s{sHead}, 0')
    A(f'    s_mov_b32 s{sCnt}, {SPH // NB}')
    A('    s_waitcnt lgkmcnt(0)')
    A('    s_barrier')
    if sampler:
        A(f'    s_cmp_eq_u32 s3, {W}')
        A('    s_cbranch_scc1 L_sampler')
    curcap[0] = procap + HPW if procap else 0
    for i in range(2, 4): lv(0, i)
    curcap[0] = procap
    for b in range(1, NB):
        A(f'    s_add_u32 s{sKo}, s{sKo}, {STEP}')
        for i in range(4): lk(b, i)
        for i in range(4): lv(b, i)
    A(f'    s_add_u32 s{sKo}, s{sKo}, {STEP}')
    A(f'    s_waitcnt vmcnt({8*NB - 6})                     ; q landed')
    curcap[0] = cap
    WKV = 4 * (2 * NB - 1)
    A('L_loop:')
    inloop[0] = True
    if tailsteps:
        A(f'    s_cmp_ge_u32 s{sKo}, {(1 << RB) - (tailsteps - NB) * STEP}')
        A('    s_cselect_b64 vcc, -1, 0')
    for b in range(NB):
        if sampler:
            A('    s_mov_b64 exec, 1')
            A(f'    ds_add_u32 v{vzero}, v{vone} offset:{PROG}')
            A('    s_mov_b64 exec, -1')
        if not cap or cap > WKV or tailsteps: A(f'    s_waitcnt vmcnt({WKV})')
        q = vq
        for i in range(4):
            A(f'    v_dot2_f32_bf16 v{vt+i}, v{KB(b,i)}, v{q}, 0')
        for w in range(1, 4):
            for i in range(4):
                A(f'    v_dot2_f32_bf16 v{vt+i}, v{KB(b,i)+w}, v{q+w}, v{vt+i}')
        lk(b, 0)
        A(f'    v_add_f32_dpp v{vt}, v{vt}, v{vt} row_ror:8 row_mask:0xf bank_mask:0x3')
        A(f'    v_add_f32_dpp v{vt+2}, v{vt+2}, v{vt+2} row_ror:8 row_mask:0xf bank_mask:0x3')
        A('    s_nop 0')
        A(f'    v_add_f32_dpp v{vt}, v{vt+1}, v{vt+1} row_ror:8 row_mask:0xf bank_mask:0xc')
        A(f'    v_add_f32_dpp v{vt+2}, v{vt+3}, v{vt+3} row_ror:8 row_mask:0xf bank_mask:0xc')
        A('    s_nop 0')
        A(f'    v_add_f32_dpp v{vw}, v{vt}, v{vt} row_ror:12 row_mask:0xf bank_mask:0x5')
        A('    s_nop 1')
        A(f'    v_add_f32_dpp v{vw}, v{vt+2}, v{vt+2} row_ror:4 row_mask:0xf bank_mask:0xa')
        A('    s_nop 0')
        lk(b, 1)
        A(f'    v_add_f32_dpp v{vw}, v{vw}, v{vw} quad_perm:[1,0,3,2]{DPP}')
        A('    s_nop 1')
        A(f'    v_add_f32_dpp v{vw}, v{vw}, v{vw} quad_perm:[2,3,0,1]{DPP}')
        A(f'    v_mul_f32 v{vw}, s33, v{vw}')
        A('    s_nop 1')
        A(f'    v_max_f32_dpp v{vx}, v{vw}, v{vw} row_ror:4{DPP}')
        A('    s_nop 0')
        lk(b, 2)
        A(f'    v_max_f32_dpp v{vx}, v{vx}, v{vx} row_ror:8{DPP}')
        A(f'    v_max_f32 v{vmn}, v{vm}, v{vx}')
        A(f'    v_sub_f32 v{val}, v{vm}, v{vmn}')
        A(f'    v_sub_f32 v{vp}, v{vw}, v{vmn}')
        A(f'    v_exp_f32 v{val}, v{val}')
        A(f'    v_exp_f32 v{vp}, v{vp}')
        A(f'    v_mov_b32 v{vm}, v{vmn}')
        A(f'    v_fma_f32 v{vl}, v{vl}, v{val}, v{vp}')
        for e in range(8):
            A(f'    v_mul_f32 v{vacc+e}, v{val}, v{vacc+e}')
        lk(b, 3)
        if not cap or cap > WKV or tailsteps: A(f'    s_waitcnt vmcnt({WKV})')
        src_lane = [0, 8, 4, 12]
        for i in range(4):
            for w in range(4):
                A(f'    v_lshlrev_b32 v{vtmp+2*w}, 16, v{VB(b,i)+w}')
                A(f'    v_and_b32 v{vtmp+2*w+1}, s34, v{VB(b,i)+w}')
            lv(b, i)
            for e in range(8):
                A(f'    v_fmac_f32_dpp v{vacc+e}, v{vp}, v{vtmp+e} row_newbcast:{src_lane[i]}{DPP}')
        A(f'    s_add_u32 s{sKo}, s{sKo}, {STEP}')
    A(f'    s_sub_u32 s{sCnt}, s{sCnt}, 1')
    A(f'    s_cmp_lg_u32 s{sCnt}, 0')
    A('    s_cbranch_scc1 L_loop')
    A(f'    v_add_f32_dpp v{vl}, v{vl}, v{vl} row_ror:4{DPP}')
    A(f'    v_mov_b32 v{vx}, v{vm}')
    A(f'    v_mov_b32 v{vw}, v{vm}')
    A(f'    v_add_f32_dpp v{vl}, v{vl}, v{vl} row_ror:8{DPP}')
    A('    s_nop 0')
    A(f'    v_permlane32_swap_b32 v{vx}, v{vw}')
    A('    s_nop 1')
    A(f'    v_max_f32 v{vx}, v{vx}, v{vw}')
    A(f'    v_mov_b32 v{vw}, v{vx}')
    A('    s_nop 1')
    A(f'    v_permlane16_swap_b32 v{vx}, v{vw}')
    A('    s_nop 1')
    A(f'    v_max_f32 v{vmn}, v{vx}, v{vw}')
    A(f'    v_sub_f32 v{val}, v{vm}, v{vmn}')
    A(f'    v_exp_f32 v{val}, v{val}')
    A(f'    s_mul_i32 s63, s{sHead}, {SL}')
    A(f'    v_mul_f32 v{vl}, v{val}, v{vl}')
    for e in range(8):
        A(f'    v_mul_f32 v{vacc+e}, v{val}, v{vacc+e}')
    A(f'    v_mov_b32 v{vx}, v{vl}')
    A('    s_lshl_b32 s64, s3, 9')
    A('    s_add_u32 s64, s64, s63')
    for k in range(4):
        A(f'    v_permlane32_swap_b32 v{vacc+k}, v{vacc+k+4}')
    A(f'    v_permlane32_swap_b32 v{vl}, v{vx}')
    A(f'    v_add_u32 v4, s64, v{vL8}')
    A('    s_lshl_b32 s64, s3, 3')
    for k in range(4):
        A(f'    v_add_f32 v{vacc+k}, v{vacc+k}, v{vacc+k+4}')
    A(f'    v_add_f32 v{vl}, v{vl}, v{vx}')
    A(f'    v_mov_b32 v{vx}, v{vl}')
    A('    s_add_u32 s64, s64, s63')
    A('    v_mov_b32 v5, s64')
    A(f'    v_permlane16_swap_b32 v{vacc}, v{vacc+2}')
    A(f'    v_permlane16_swap_b32 v{vacc+1}, v{vacc+3}')
    A(f'    v_permlane16_swap_b32 v{vl}, v{vx}')
    A(f'    s_lshl_b32 s65, s{sHead}, 2')
    A('    v_mov_b32 v6, s65')
    A(f'    v_add_f32 v{vacc}, v{vacc}, v{vacc+2}')
    A(f'    v_add_f32 v{vacc+1}, v{vacc+1}, v{vacc+3}')
    A(f'    v_add_f32 v{vmn+1}, v{vl}, v{vx}')
    A(f'    ds_write_b64 v4, v[{vacc}:{vacc+1}]')
    A(f'    ds_write_b64 v5, v[{vmn}:{vmn+1}] offset:{MLO}')
    A('    s_mov_b64 exec, 1')
    A(f'    ds_add_rtn_u32 v7, v6, v{vone} offset:{CNT}')
    A('    s_mov_b64 exec, -1')
    A('    s_waitcnt lgkmcnt(0)')
    A('    v_readfirstlane_b32 s66, v7')
    A(f'    v_add_u32 v4, s63, v{vL8}')
    A('    v_mov_b32 v5, s63')
    A(f'    s_cmp_lg_u32 s66, {W-1}')
    A('    s_cbranch_scc1 L_unit_ret')
    for e2 in range(W // 2):
        A(f'    ds_read_b128 v[{vml+4*e2}:{vml+4*e2+3}], v5 offset:{MLO+16*e2}')
    for e in range(W):
        A(f'    ds_read_b64 v[{vdat+2*e}:{vdat+2*e+1}], v4 offset:{512*e}')
    A(f'    s_waitcnt lgkmcnt({W})')
    A(f'    v_max_f32 v{vmn}, v{vml}, v{vml+2}')
    for e in range(2, W, 2):
        A(f'    v_max3_f32 v{vmn}, v{vmn}, v{vml+2*e}, v{vml+2*e+2}')
    for e in range(W):
        A(f'    v_sub_f32 v{vml+2*e}, v{vml+2*e}, v{vmn}')
    for e in range(W):
        A(f'    v_exp_f32 v{vml+2*e}, v{vml+2*e}')
    A(f'    s_lshl_b32 s64, s{sHead}, 8')
    A(f'    v_mul_f32 v{vl}, v{vml}, v{vml+1}')
    for e in range(1, W):
        A(f'    v_fmac_f32 v{vl}, v{vml+2*e}, v{vml+2*e+1}')
    A(f'    v_rcp_f32 v{vx}, v{vl}')
    A('    s_waitcnt lgkmcnt(0)')
    A(f'    v_mul_f32 v{vt}, v{vml}, v{vdat}')
    A(f'    v_mul_f32 v{vt+1}, v{vml}, v{vdat+1}')
    for e in range(1, W):
        A(f'    v_fmac_f32 v{vt}, v{vml+2*e}, v{vdat+2*e}')
        A(f'    v_fmac_f32 v{vt+1}, v{vml+2*e}, v{vdat+2*e+1}')
    A(f'    v_mul_f32 v{vt}, v{vt}, v{vx}')
    A(f'    v_mul_f32 v{vt+1}, v{vt+1}, v{vx}')
    A(f'    v_cvt_pk_bf16_f32 v7, v{vt}, v{vt+1}')
    A(f'    buffer_store_dword v7, v{vOut}, s[24:27], s64 offen')
    if diag:
        A('    s_memrealtime s[68:69]')
        A('    s_getreg_b32 s62, hwreg(HW_REG_XCC_ID)')
        A('    s_waitcnt lgkmcnt(0)')
        A('    s_or_b32 s62, s62, 0x100')
        A(f'    v_mov_b32 v{vml}, s70')
        A(f'    v_mov_b32 v{vml+1}, s62')
        A(f'    v_mov_b32 v{vml+2}, s68')
        A(f'    v_mov_b32 v{vml+3}, s68')
        A(f'    s_lshl_b32 s64, s2, {4 + HPW - 1}')
        A(f'    s_lshl_b32 s65, s{sHead}, 4')
        A('    s_add_u32 s64, s64, s65')
        A(f'    s_add_u32 s64, s64, {WS_DIAG}')
        A('    s_mov_b64 exec, 1')
        A(f'    buffer_store_dwordx4 v[{vml}:{vml+3}], v{vzero}, s[28:31], s64 offen')
        A('    s_mov_b64 exec, -1')
    A('L_unit_ret:')
    if HPW == 2:
        A(f'    s_cmp_lg_u32 s{sHead}, 0')
        A('    s_cbranch_scc1 L_end')
        A(f'    s_mov_b32 s{sHead}, 1')
        A(f'    s_mov_b32 s{sCnt}, {SPH // NB}')
        for e in range(8):
            A(f'    v_mov_b32 v{vacc+e}, 0')
        A(f'    v_mov_b32 v{vm}, 0xff800000')
        A(f'    v_mov_b32 v{vl}, 0')
        for e in range(4):
            A(f'    v_mov_b32 v{vq+e}, v{vq+4+e}')
        A('    s_branch L_loop')
    if sampler:
        A('    s_endpgm')
        A('L_sampler:')
        A(f'    s_lshl_b32 s82, s2, {11 + HPW - 1}')
        A(f'    s_add_u32 s82, s82, {WS_DIAG + 65536}')
        A(f'    s_add_u32 s83, s82, {2048 * HPW}')
        A('L_s_loop:')
        A(f'    ds_read_b32 v5, v{vzero} offset:{PROG}')
        A('    s_memrealtime s[84:85]')
        A('    s_waitcnt lgkmcnt(0)')
        A('    s_cmp_ge_u32 s82, s83')
        A('    s_cbranch_scc1 L_end')
        A('    v_mov_b32 v14, s84')
        A('    v_mov_b32 v15, v5')
        A('    s_mov_b64 exec, 1')
        A(f'    buffer_store_dwordx2 v[14:15], v{vzero}, s[28:31], s82 offen')
        A('    s_mov_b64 exec, -1')
        A('    s_add_u32 s82, s82, 8')
        A('    v_readfirstlane_b32 s62, v5')
        A(f'    s_cmp_ge_u32 s62, {128 * HPW}')
        A('    s_cbranch_scc1 L_end')
        A(f'    s_sleep {8 if HPW == 2 else 14}')
        A('    s_branch L_s_loop')
    A('L_end:')
    A('    s_endpgm')
    A('L_code_end:')
    A('    s_endpgm')
    A('.section .rodata,"a"')
    A('.p2align 6')
    A(f'.amdhsa_kernel {NAME}')
    A(f'  .amdhsa_next_free_vgpr {nv}')
    A('  .amdhsa_next_free_sgpr 88')
    A(f'  .amdhsa_accum_offset {(nv + 3) // 4 * 4}')
    A('  .amdhsa_group_segment_fixed_size 0')
    A('  .amdhsa_kernarg_size 48')
    A('  .amdhsa_user_sgpr_count 2')
    A('  .amdhsa_user_sgpr_kernarg_segment_ptr 1')
    A('  .amdhsa_system_sgpr_workgroup_id_x 1')
    A('  .amdhsa_float_denorm_mode_32 3')
    A('.end_amdhsa_kernel')
    return '\n'.join(L) + '\n'

if __name__ == '__main__':
    ap = argparse.ArgumentParser()
    ap.add_argument('out')
    ap.add_argument('--G', type=int, default=256)
    ap.add_argument('--W', type=int, default=4)
    ap.add_argument('--NB', type=int, default=2)
    ap.add_argument('--cap', type=int, default=6)
    ap.add_argument('--procap', type=int, default=None)
    ap.add_argument('--policy', default='nt')
    ap.add_argument('--diag', action='store_true')
    ap.add_argument('--sampler', action='store_true')
    ap.add_argument('--codepf', action='store_true')
    ap.add_argument('--tail', type=int, default=0)
    a = ap.parse_args()
    open(a.out, 'w').write(gen(a.G, a.W, a.NB, a.cap, a.procap, a.policy, a.diag or a.sampler, a.sampler, a.codepf, tailsteps=a.tail))
```

```python
import sys, argparse, struct

def f2u(x):
    return struct.unpack('<I', struct.pack('<f', x))[0]

HEADER = open('standalone__mha_softmax__sampling.s.ref').read().split('; Override launch')[0]
NAME = 'standalone__mha_softmax__sampling_kernel'

def gen(G=256, W=4, NB=2, cap=6, procap=None, policy='nt', diag=False, sampler=False, codepf=False, rot=0, tailcap=None, tailsteps=0, dbg=False):
    L = []
    A = L.append
    HPW = 512 // G
    SPH = 128 // W
    STEP = W * 4096
    STEPLOG = STEP.bit_length() - 1
    assert SPH % NB == 0
    if procap is None: procap = cap
    SL = W * 512 + 128
    MLO = W * 512
    CB = HPW * SL
    CNT, PROG = CB, CB + 16
    lds = (81920 + 1024) if G == 256 else 65536
    WS_DIAG = 8 << 20
    pol = (' ' + policy) if policy else ''
    DPP = ' row_mask:0xf bank_mask:0xf'
    vOff, vQo, vL8 = 1, 2, 3
    vacc, vm, vl, vt, vw, vx, vmn, val, vp, vone = 8, 16, 17, 18, 22, 23, 24, 25, 26, 27
    vtmp = 28
    vzero, vOut = 36, 37
    vq = 40
    vml = 48
    vdat = vml + 2 * W
    vbuf = (vdat + 2 * W + 3) // 4 * 4
    def KB(b, i): return vbuf + b * 32 + i * 4
    def VB(b, i): return vbuf + b * 32 + 16 + i * 4
    nv = vbuf + NB * 32
    NW = W + (1 if sampler else 0)
    sKo, sCnt, sHead = 44, 45, 46
    A(HEADER.rstrip('\n'))
    A(f'; @launch grid=({G},1,1) block=({NW*64},1,1) lds={lds}')
    A('.amdgcn_target "amdgcn-amd-amdhsa--gfx950"')
    A('.text')
    A(f'.globl {NAME}')
    A('.p2align 8')
    A(f'.type {NAME},@function')
    A(f'{NAME}:')
    if diag or dbg:
        A('    s_memrealtime s[70:71]')
    if dbg:
        A('    s_load_dwordx2 s[36:37], s[0:1], 32')
    A('    s_load_dwordx4 s[4:7], s[0:1], 0        ; q, k')
    A('    s_load_dwordx4 s[8:11], s[0:1], 16      ; v, out')
    if diag:
        A('    s_load_dwordx2 s[38:39], s[0:1], 40     ; ws')
    A(f'    s_cmp_ge_u32 s2, {G}')
    A('    s_cbranch_scc1 L_end')
    A('    v_lshrrev_b32 v4, 6, v0')
    A('    v_and_b32 v5, 63, v0                    ; lane')
    A('    v_readfirstlane_b32 s3, v4')
    A(f'    v_lshlrev_b32 v{vOff}, 4, v5')
    A(f'    v_lshl_add_u32 v{vOff}, v4, 12, v{vOff}')
    A(f'    v_and_b32 v{vQo}, 15, v0')
    A(f'    v_lshlrev_b32 v{vQo}, 4, v{vQo}                ; (lane%16)*16')
    RB = 19 + (HPW - 1)
    A(f'    s_lshl_b32 s50, s2, {RB}')
    A(f'    s_lshl_b32 s51, s2, {8 + HPW - 1}')
    A(f'    s_mov_b32 s14, {1 << RB}')
    A('    s_mov_b32 s15, 0x00020000')
    A(f'    s_mov_b32 s18, {1 << RB}')
    A('    s_mov_b32 s19, 0x00020000')
    A(f'    s_mov_b32 s22, {256 * HPW}')
    A('    s_mov_b32 s23, 0x00020000')
    A(f'    s_mov_b32 s{sKo}, 0')
    A('    s_waitcnt lgkmcnt(0)')
    A('    s_add_u32 s12, s6, s50')
    A('    s_addc_u32 s13, s7, 0')
    A('    s_and_b32 s13, s13, 0xffff')
    A('    s_add_u32 s16, s8, s50')
    A('    s_addc_u32 s17, s9, 0')
    A('    s_and_b32 s17, s17, 0xffff')
    if sampler:
        A(f'    s_cmp_eq_u32 s3, {W}')
        A('    s_cbranch_scc1 L_skip_first')
    curcap = [procap]
    ncw = [0]
    inloop = [False]
    def capwait():
        if not curcap[0]: return
        if inloop[0] and tailsteps:
            k = ncw[0]; ncw[0] += 1
            A(f'    s_cbranch_vccnz L_cw{k}')
            A(f'    s_waitcnt vmcnt({curcap[0]-1})')
            A(f'L_cw{k}:')
        else:
            A(f'    s_waitcnt vmcnt({curcap[0]-1})')
    def lk(b, i):
        capwait()
        A(f'    buffer_load_dwordx4 v[{KB(b,i)}:{KB(b,i)+3}], v{vOff}, s[12:15], s{sKo} offen offset:{i*1024}{pol}')
    def lv(b, i):
        capwait()
        A(f'    buffer_load_dwordx4 v[{VB(b,i)}:{VB(b,i)+3}], v{vOff}, s[16:19], s{sKo} offen offset:{i*1024}{pol}')
    curcap[0] = 0
    for i in range(4): lk(0, i)
    for i in range(2): lv(0, i)
    if sampler: A('L_skip_first:')
    A('    s_add_u32 s20, s4, s51')
    A('    s_addc_u32 s21, s5, 0')
    A('    s_and_b32 s21, s21, 0xffff')
    for h in range(HPW):
        A(f'    buffer_load_dwordx4 v[{vq+4*h}:{vq+4*h+3}], v{vQo}, s[20:23], 0 offen offset:{256*h}')
    if codepf:
        A('    s_getpc_b64 s[62:63]')
        A('L_pfbase:')
        A('    v_lshlrev_b32 v6, 6, v0')
        A('    v_cmp_gt_u32 vcc, L_code_end-L_pfbase, v6')
        A('    s_and_saveexec_b64 s[64:65], vcc')
        A('    s_cbranch_execz L_nopf')
        A('    global_load_dword v7, v6, s[62:63]')
        A('L_nopf:')
        A('    s_mov_b64 exec, s[64:65]')
    A('    s_add_u32 s24, s10, s51')
    A('    s_addc_u32 s25, s11, 0')
    A('    s_and_b32 s25, s25, 0xffff')
    A(f'    s_mov_b32 s26, {256 * HPW}')
    A('    s_mov_b32 s27, 0x00020000')
    if diag:
        A('    s_mov_b32 s28, s38')
        A('    s_and_b32 s29, s39, 0xffff')
        A(f'    s_mov_b32 s30, {WS_DIAG + 65536 + (2 << 20)}')
        A('    s_mov_b32 s31, 0x00020000')
    c = (128 ** -0.5) * 1.4426950408889634
    A(f'    s_mov_b32 s33, 0x{f2u(c):08x}           ; scale*log2(e)')
    A('    s_mov_b32 s34, 0xffff0000')
    A(f'    v_lshlrev_b32 v{vL8}, 3, v5                ; lane*8')
    A(f'    v_lshrrev_b32 v6, 4, v5')
    A(f'    v_lshl_add_u32 v{vOut}, v6, 2, v{vQo}')
    A(f'    v_mov_b32 v{vone}, 1')
    A(f'    v_mov_b32 v{vzero}, 0')
    A(f'    v_mov_b32 v{vzero+2}, 0')
    A(f'    v_mov_b32 v{vzero+3}, 0')
    A(f'    ds_write_b64 v{vzero}, v[{vzero+2}:{vzero+3}] offset:{CNT}')
    A(f'    ds_write_b32 v{vzero}, v{vzero} offset:{PROG}')
    for e in range(8):
        A(f'    v_mov_b32 v{vacc+e}, 0')
    A(f'    v_mov_b32 v{vm}, 0xff800000')
    A(f'    v_mov_b32 v{vl}, 0')
    A(f'    s_mov_b32 s{sHead}, 0')
    A(f'    s_mov_b32 s{sCnt}, {SPH // NB}')
    A('    s_waitcnt lgkmcnt(0)')
    A('    s_barrier')
    if sampler:
        A(f'    s_cmp_eq_u32 s3, {W}')
        A('    s_cbranch_scc1 L_sampler')
    curcap[0] = procap + HPW if procap else 0
    for i in range(2, 4): lv(0, i)
    curcap[0] = procap
    for b in range(1, NB):
        A(f'    s_add_u32 s{sKo}, s{sKo}, {STEP}')
        for i in range(4): lk(b, i)
        for i in range(4): lv(b, i)
    A(f'    s_add_u32 s{sKo}, s{sKo}, {STEP}')
    A(f'    s_waitcnt vmcnt({8*NB - 6})                     ; q landed')
    curcap[0] = cap
    WKV = 4 * (2 * NB - 1)
    A('L_loop:')
    inloop[0] = True
    if tailsteps:
        A(f'    s_cmp_ge_u32 s{sKo}, {(1 << RB) - (tailsteps - NB) * STEP}')
        A('    s_cselect_b64 vcc, -1, 0')
    for b in range(NB):
        if sampler:
            A('    s_mov_b64 exec, 1')
            A(f'    ds_add_u32 v{vzero}, v{vone} offset:{PROG}')
            A('    s_mov_b64 exec, -1')
        if not cap or cap > WKV or tailsteps: A(f'    s_waitcnt vmcnt({WKV})')
        q = vq
        for i in range(4):
            A(f'    v_dot2_f32_bf16 v{vt+i}, v{KB(b,i)}, v{q}, 0')
        for w in range(1, 4):
            for i in range(4):
                A(f'    v_dot2_f32_bf16 v{vt+i}, v{KB(b,i)+w}, v{q+w}, v{vt+i}')
        lk(b, 0)
        A(f'    v_add_f32_dpp v{vt}, v{vt}, v{vt} row_ror:8 row_mask:0xf bank_mask:0x3')
        A(f'    v_add_f32_dpp v{vt+2}, v{vt+2}, v{vt+2} row_ror:8 row_mask:0xf bank_mask:0x3')
        A('    s_nop 0')
        A(f'    v_add_f32_dpp v{vt}, v{vt+1}, v{vt+1} row_ror:8 row_mask:0xf bank_mask:0xc')
        A(f'    v_add_f32_dpp v{vt+2}, v{vt+3}, v{vt+3} row_ror:8 row_mask:0xf bank_mask:0xc')
        A('    s_nop 0')
        A(f'    v_add_f32_dpp v{vw}, v{vt}, v{vt} row_ror:12 row_mask:0xf bank_mask:0x5')
        A('    s_nop 1')
        A(f'    v_add_f32_dpp v{vw}, v{vt+2}, v{vt+2} row_ror:4 row_mask:0xf bank_mask:0xa')
        A('    s_nop 0')
        lk(b, 1)
        A(f'    v_add_f32_dpp v{vw}, v{vw}, v{vw} quad_perm:[1,0,3,2]{DPP}')
        A('    s_nop 1')
        A(f'    v_add_f32_dpp v{vw}, v{vw}, v{vw} quad_perm:[2,3,0,1]{DPP}')
        A(f'    v_mul_f32 v{vw}, s33, v{vw}')
        A('    s_nop 1')
        A(f'    v_max_f32_dpp v{vx}, v{vw}, v{vw} row_ror:4{DPP}')
        A('    s_nop 0')
        lk(b, 2)
        A(f'    v_max_f32_dpp v{vx}, v{vx}, v{vx} row_ror:8{DPP}')
        A(f'    v_max_f32 v{vmn}, v{vm}, v{vx}')
        A(f'    v_sub_f32 v{val}, v{vm}, v{vmn}')
        A(f'    v_sub_f32 v{vp}, v{vw}, v{vmn}')
        A(f'    v_exp_f32 v{val}, v{val}')
        A(f'    v_exp_f32 v{vp}, v{vp}')
        A(f'    v_mov_b32 v{vm}, v{vmn}')
        A(f'    v_fma_f32 v{vl}, v{vl}, v{val}, v{vp}')
        for e in range(8):
            A(f'    v_mul_f32 v{vacc+e}, v{val}, v{vacc+e}')
        lk(b, 3)
        if not cap or cap > WKV or tailsteps: A(f'    s_waitcnt vmcnt({WKV})')
        src_lane = [0, 8, 4, 12]
        for i in range(4):
            for w in range(4):
                A(f'    v_lshlrev_b32 v{vtmp+2*w}, 16, v{VB(b,i)+w}')
                A(f'    v_and_b32 v{vtmp+2*w+1}, s34, v{VB(b,i)+w}')
            lv(b, i)
            for e in range(8):
                A(f'    v_fmac_f32_dpp v{vacc+e}, v{vp}, v{vtmp+e} row_newbcast:{src_lane[i]}{DPP}')
        A(f'    s_add_u32 s{sKo}, s{sKo}, {STEP}')
    A(f'    s_sub_u32 s{sCnt}, s{sCnt}, 1')
    A(f'    s_cmp_lg_u32 s{sCnt}, 0')
    A('    s_cbranch_scc1 L_loop')
    A(f'    v_add_f32_dpp v{vl}, v{vl}, v{vl} row_ror:4{DPP}')
    A(f'    v_mov_b32 v{vx}, v{vm}')
    A(f'    v_mov_b32 v{vw}, v{vm}')
    A(f'    v_add_f32_dpp v{vl}, v{vl}, v{vl} row_ror:8{DPP}')
    A('    s_nop 0')
    A(f'    v_permlane32_swap_b32 v{vx}, v{vw}')
    A('    s_nop 1')
    A(f'    v_max_f32 v{vx}, v{vx}, v{vw}')
    A(f'    v_mov_b32 v{vw}, v{vx}')
    A('    s_nop 1')
    A(f'    v_permlane16_swap_b32 v{vx}, v{vw}')
    A('    s_nop 1')
    A(f'    v_max_f32 v{vmn}, v{vx}, v{vw}')
    A(f'    v_sub_f32 v{val}, v{vm}, v{vmn}')
    A(f'    v_exp_f32 v{val}, v{val}')
    A(f'    s_mul_i32 s63, s{sHead}, {SL}')
    A(f'    v_mul_f32 v{vl}, v{val}, v{vl}')
    for e in range(8):
        A(f'    v_mul_f32 v{vacc+e}, v{val}, v{vacc+e}')
    A(f'    v_mov_b32 v{vx}, v{vl}')
    A('    s_lshl_b32 s64, s3, 9')
    A('    s_add_u32 s64, s64, s63')
    for k in range(4):
        A(f'    v_permlane32_swap_b32 v{vacc+k}, v{vacc+k+4}')
    A(f'    v_permlane32_swap_b32 v{vl}, v{vx}')
    A(f'    v_add_u32 v4, s64, v{vL8}')
    A('    s_lshl_b32 s64, s3, 3')
    for k in range(4):
        A(f'    v_add_f32 v{vacc+k}, v{vacc+k}, v{vacc+k+4}')
    A(f'    v_add_f32 v{vl}, v{vl}, v{vx}')
    A(f'    v_mov_b32 v{vx}, v{vl}')
    A('    s_add_u32 s64, s64, s63')
    A('    v_mov_b32 v5, s64')
    A(f'    v_permlane16_swap_b32 v{vacc}, v{vacc+2}')
    A(f'    v_permlane16_swap_b32 v{vacc+1}, v{vacc+3}')
    A(f'    v_permlane16_swap_b32 v{vl}, v{vx}')
    A(f'    s_lshl_b32 s65, s{sHead}, 2')
    A('    v_mov_b32 v6, s65')
    A(f'    v_add_f32 v{vacc}, v{vacc}, v{vacc+2}')
    A(f'    v_add_f32 v{vacc+1}, v{vacc+1}, v{vacc+3}')
    A(f'    v_add_f32 v{vmn+1}, v{vl}, v{vx}')
    A(f'    ds_write_b64 v4, v[{vacc}:{vacc+1}]')
    A(f'    ds_write_b64 v5, v[{vmn}:{vmn+1}] offset:{MLO}')
    A('    s_mov_b64 exec, 1')
    A(f'    ds_add_rtn_u32 v7, v6, v{vone} offset:{CNT}')
    A('    s_mov_b64 exec, -1')
    A('    s_waitcnt lgkmcnt(0)')
    A('    v_readfirstlane_b32 s66, v7')
    A(f'    v_add_u32 v4, s63, v{vL8}')
    A('    v_mov_b32 v5, s63')
    A(f'    s_cmp_lg_u32 s66, {W-1}')
    A('    s_cbranch_scc1 L_unit_ret')
    for e2 in range(W // 2):
        A(f'    ds_read_b128 v[{vml+4*e2}:{vml+4*e2+3}], v5 offset:{MLO+16*e2}')
    for e in range(W):
        A(f'    ds_read_b64 v[{vdat+2*e}:{vdat+2*e+1}], v4 offset:{512*e}')
    A(f'    s_waitcnt lgkmcnt({W})')
    A(f'    v_max_f32 v{vmn}, v{vml}, v{vml+2}')
    for e in range(2, W, 2):
        A(f'    v_max3_f32 v{vmn}, v{vmn}, v{vml+2*e}, v{vml+2*e+2}')
    for e in range(W):
        A(f'    v_sub_f32 v{vml+2*e}, v{vml+2*e}, v{vmn}')
    for e in range(W):
        A(f'    v_exp_f32 v{vml+2*e}, v{vml+2*e}')
    A(f'    s_lshl_b32 s64, s{sHead}, 8')
    A(f'    v_mul_f32 v{vl}, v{vml}, v{vml+1}')
    for e in range(1, W):
        A(f'    v_fmac_f32 v{vl}, v{vml+2*e}, v{vml+2*e+1}')
    A(f'    v_rcp_f32 v{vx}, v{vl}')
    A('    s_waitcnt lgkmcnt(0)')
    A(f'    v_mul_f32 v{vt}, v{vml}, v{vdat}')
    A(f'    v_mul_f32 v{vt+1}, v{vml}, v{vdat+1}')
    for e in range(1, W):
        A(f'    v_fmac_f32 v{vt}, v{vml+2*e}, v{vdat+2*e}')
        A(f'    v_fmac_f32 v{vt+1}, v{vml+2*e}, v{vdat+2*e+1}')
    A(f'    v_mul_f32 v{vt}, v{vt}, v{vx}')
    A(f'    v_mul_f32 v{vt+1}, v{vt+1}, v{vx}')
    A(f'    v_cvt_pk_bf16_f32 v7, v{vt}, v{vt+1}')
    A(f'    buffer_store_dword v7, v{vOut}, s[24:27], s64 offen')
    if diag:
        A('    s_memrealtime s[68:69]')
        A('    s_getreg_b32 s62, hwreg(HW_REG_XCC_ID)')
        A('    s_waitcnt lgkmcnt(0)')
        A('    s_or_b32 s62, s62, 0x100')
        A(f'    v_mov_b32 v{vml}, s70')
        A(f'    v_mov_b32 v{vml+1}, s62')
        A(f'    v_mov_b32 v{vml+2}, s68')
        A(f'    v_mov_b32 v{vml+3}, s68')
        A(f'    s_lshl_b32 s64, s2, {4 + HPW - 1}')
        A(f'    s_lshl_b32 s65, s{sHead}, 4')
        A('    s_add_u32 s64, s64, s65')
        A(f'    s_add_u32 s64, s64, {WS_DIAG}')
        A('    s_mov_b64 exec, 1')
        A(f'    buffer_store_dwordx4 v[{vml}:{vml+3}], v{vzero}, s[28:31], s64 offen')
        A('    s_mov_b64 exec, -1')
    if dbg:
        A('    s_memrealtime s[68:69]')
        A('    s_waitcnt lgkmcnt(0)')
        A('    s_sub_u32 s62, s68, s70')
        A('    s_not_b32 s63, s70')
        A(f'    s_lshl_b32 s64, s{sHead}, 4')
        A('    s_mov_b64 exec, 1')
        A(f'    v_mov_b32 v{vml}, s62')
        A(f'    v_mov_b32 v{vml+1}, s68')
        A(f'    v_mov_b32 v{vml+2}, s63')
        A(f'    v_mov_b32 v{vml+3}, s64')
        A(f'    v_not_b32 v{vdat}, v{vml}')
        A(f'    global_atomic_umax v{vml+3}, v{vml}, s[36:37]')
        A(f'    global_atomic_umax v{vml+3}, v{vml+1}, s[36:37] offset:4')
        A(f'    global_atomic_umax v{vml+3}, v{vml+2}, s[36:37] offset:8')
        A(f'    global_atomic_umax v{vml+3}, v{vdat}, s[36:37] offset:12')
        A('    s_mov_b64 exec, -1')
    A('L_unit_ret:')
    if HPW == 2:
        A(f'    s_cmp_lg_u32 s{sHead}, 0')
        A('    s_cbranch_scc1 L_end')
        A(f'    s_mov_b32 s{sHead}, 1')
        A(f'    s_mov_b32 s{sCnt}, {SPH // NB}')
        for e in range(8):
            A(f'    v_mov_b32 v{vacc+e}, 0')
        A(f'    v_mov_b32 v{vm}, 0xff800000')
        A(f'    v_mov_b32 v{vl}, 0')
        for e in range(4):
            A(f'    v_mov_b32 v{vq+e}, v{vq+4+e}')
        A('    s_branch L_loop')
    if sampler:
        A('    s_endpgm')
        A('L_sampler:')
        A(f'    s_lshl_b32 s82, s2, {11 + HPW - 1}')
        A(f'    s_add_u32 s82, s82, {WS_DIAG + 65536}')
        A(f'    s_add_u32 s83, s82, {2048 * HPW}')
        A('L_s_loop:')
        A(f'    ds_read_b32 v5, v{vzero} offset:{PROG}')
        A('    s_memrealtime s[84:85]')
        A('    s_waitcnt lgkmcnt(0)')
        A('    s_cmp_ge_u32 s82, s83')
        A('    s_cbranch_scc1 L_end')
        A('    v_mov_b32 v14, s84')
        A('    v_mov_b32 v15, v5')
        A('    s_mov_b64 exec, 1')
        A(f'    buffer_store_dwordx2 v[14:15], v{vzero}, s[28:31], s82 offen')
        A('    s_mov_b64 exec, -1')
        A('    s_add_u32 s82, s82, 8')
        A('    v_readfirstlane_b32 s62, v5')
        A(f'    s_cmp_ge_u32 s62, {128 * HPW}')
        A('    s_cbranch_scc1 L_end')
        A(f'    s_sleep {8 if HPW == 2 else 14}')
        A('    s_branch L_s_loop')
    A('L_end:')
    A('    s_endpgm')
    A('L_code_end:')
    A('    s_endpgm')
    A('.section .rodata,"a"')
    A('.p2align 6')
    A(f'.amdhsa_kernel {NAME}')
    A(f'  .amdhsa_next_free_vgpr {nv}')
    A('  .amdhsa_next_free_sgpr 88')
    A(f'  .amdhsa_accum_offset {(nv + 3) // 4 * 4}')
    A('  .amdhsa_group_segment_fixed_size 0')
    A('  .amdhsa_kernarg_size 48')
    A('  .amdhsa_user_sgpr_count 2')
    A('  .amdhsa_user_sgpr_kernarg_segment_ptr 1')
    A('  .amdhsa_system_sgpr_workgroup_id_x 1')
    A('  .amdhsa_float_denorm_mode_32 3')
    A('.end_amdhsa_kernel')
    return '\n'.join(L) + '\n'

if __name__ == '__main__':
    ap = argparse.ArgumentParser()
    ap.add_argument('out')
    ap.add_argument('--G', type=int, default=256)
    ap.add_argument('--W', type=int, default=4)
    ap.add_argument('--NB', type=int, default=2)
    ap.add_argument('--cap', type=int, default=6)
    ap.add_argument('--procap', type=int, default=None)
    ap.add_argument('--policy', default='nt')
    ap.add_argument('--diag', action='store_true')
    ap.add_argument('--sampler', action='store_true')
    ap.add_argument('--codepf', action='store_true')
    ap.add_argument('--tail', type=int, default=0)
    ap.add_argument('--dbg', action='store_true')
    a = ap.parse_args()
    open(a.out, 'w').write(gen(a.G, a.W, a.NB, a.cap, a.procap, a.policy, a.diag or a.sampler, a.sampler, a.codepf, tailsteps=a.tail, dbg=a.dbg))
```

```python
import sys, argparse, struct

def f2u(x):
    return struct.unpack('<I', struct.pack('<f', x))[0]

HEADER = open('standalone__mha_softmax__sampling.s.ref').read().split('; Override launch')[0]
NAME = 'standalone__mha_softmax__sampling_kernel'

def gen(G=256, W=4, NB=2, cap=6, procap=None, policy='nt', diag=False, sampler=False, codepf=False, rot=0, tailcap=None, tailsteps=0, dbg=False):
    L = []
    A = L.append
    HPW = 512 // G
    SPH = 128 // W
    STEP = W * 4096
    STEPLOG = STEP.bit_length() - 1
    assert SPH % NB == 0
    if procap is None: procap = cap
    SL = W * 512 + 128
    MLO = W * 512
    CB = HPW * SL
    CNT, PROG = CB, CB + 16
    lds = (81920 + 1024) if G == 256 else 65536
    WS_DIAG = 8 << 20
    pol = (' ' + policy) if policy else ''
    DPP = ' row_mask:0xf bank_mask:0xf'
    vOff, vQo, vL8 = 1, 2, 3
    vacc, vm, vl, vt, vw, vx, vmn, val, vp, vone = 8, 16, 17, 18, 22, 23, 24, 25, 26, 27
    vtmp = 28
    vzero, vOut = 36, 37
    vq = 40
    vml = 48
    vdat = vml + 2 * W
    vbuf = (vdat + 2 * W + 3) // 4 * 4
    def KB(b, i): return vbuf + b * 32 + i * 4
    def VB(b, i): return vbuf + b * 32 + 16 + i * 4
    nv = vbuf + NB * 32
    NW = W + (1 if sampler else 0)
    sKo, sCnt, sHead = 44, 45, 46
    A(HEADER.rstrip('\n'))
    A(f'; @launch grid=({G},1,1) block=({NW*64},1,1) lds={lds}')
    A('.amdgcn_target "amdgcn-amd-amdhsa--gfx950"')
    A('.text')
    A(f'.globl {NAME}')
    A('.p2align 8')
    A(f'.type {NAME},@function')
    A(f'{NAME}:')
    if diag or dbg:
        A('    s_memrealtime s[70:71]')
    if dbg:
        A('    s_load_dwordx2 s[36:37], s[0:1], 32')
    A('    s_load_dwordx4 s[4:7], s[0:1], 0        ; q, k')
    A('    s_load_dwordx4 s[8:11], s[0:1], 16      ; v, out')
    if diag:
        A('    s_load_dwordx2 s[38:39], s[0:1], 40     ; ws')
    A(f'    s_cmp_ge_u32 s2, {G}')
    A('    s_cbranch_scc1 L_end')
    A('    v_lshrrev_b32 v4, 6, v0')
    A('    v_and_b32 v5, 63, v0                    ; lane')
    A('    v_readfirstlane_b32 s3, v4')
    A(f'    v_lshlrev_b32 v{vOff}, 4, v5')
    A(f'    v_lshl_add_u32 v{vOff}, v4, 12, v{vOff}')
    A(f'    v_and_b32 v{vQo}, 15, v0')
    A(f'    v_lshlrev_b32 v{vQo}, 4, v{vQo}                ; (lane%16)*16')
    RB = 19 + (HPW - 1)
    A(f'    s_lshl_b32 s50, s2, {RB}')
    A(f'    s_lshl_b32 s51, s2, {8 + HPW - 1}')
    A(f'    s_mov_b32 s14, {1 << RB}')
    A('    s_mov_b32 s15, 0x00020000')
    A(f'    s_mov_b32 s18, {1 << RB}')
    A('    s_mov_b32 s19, 0x00020000')
    A(f'    s_mov_b32 s22, {256 * HPW}')
    A('    s_mov_b32 s23, 0x00020000')
    A(f'    s_mov_b32 s{sKo}, 0')
    A('    s_waitcnt lgkmcnt(0)')
    A('    s_add_u32 s12, s6, s50')
    A('    s_addc_u32 s13, s7, 0')
    A('    s_and_b32 s13, s13, 0xffff')
    A('    s_add_u32 s16, s8, s50')
    A('    s_addc_u32 s17, s9, 0')
    A('    s_and_b32 s17, s17, 0xffff')
    if sampler:
        A(f'    s_cmp_eq_u32 s3, {W}')
        A('    s_cbranch_scc1 L_skip_first')
    curcap = [procap]
    ncw = [0]
    inloop = [False]
    def capwait():
        if not curcap[0]: return
        if inloop[0] and tailsteps:
            k = ncw[0]; ncw[0] += 1
            A(f'    s_cbranch_vccnz L_cw{k}')
            A(f'    s_waitcnt vmcnt({curcap[0]-1})')
            A(f'L_cw{k}:')
        else:
            A(f'    s_waitcnt vmcnt({curcap[0]-1})')
    def lk(b, i):
        capwait()
        A(f'    buffer_load_dwordx4 v[{KB(b,i)}:{KB(b,i)+3}], v{vOff}, s[12:15], s{sKo} offen offset:{i*1024}{pol}')
    def lv(b, i):
        capwait()
        A(f'    buffer_load_dwordx4 v[{VB(b,i)}:{VB(b,i)+3}], v{vOff}, s[16:19], s{sKo} offen offset:{i*1024}{pol}')
    curcap[0] = 0
    for i in range(4): lk(0, i)
    for i in range(2): lv(0, i)
    if sampler: A('L_skip_first:')
    A('    s_add_u32 s20, s4, s51')
    A('    s_addc_u32 s21, s5, 0')
    A('    s_and_b32 s21, s21, 0xffff')
    for h in range(HPW):
        A(f'    buffer_load_dwordx4 v[{vq+4*h}:{vq+4*h+3}], v{vQo}, s[20:23], 0 offen offset:{256*h}')
    if codepf:
        A('    s_getpc_b64 s[62:63]')
        A('L_pfbase:')
        A('    v_lshlrev_b32 v6, 6, v0')
        A('    v_cmp_gt_u32 vcc, L_code_end-L_pfbase, v6')
        A('    s_and_saveexec_b64 s[64:65], vcc')
        A('    s_cbranch_execz L_nopf')
        A('    global_load_dword v7, v6, s[62:63]')
        A('L_nopf:')
        A('    s_mov_b64 exec, s[64:65]')
    A('    s_add_u32 s24, s10, s51')
    A('    s_addc_u32 s25, s11, 0')
    A('    s_and_b32 s25, s25, 0xffff')
    A(f'    s_mov_b32 s26, {256 * HPW}')
    A('    s_mov_b32 s27, 0x00020000')
    if diag:
        A('    s_mov_b32 s28, s38')
        A('    s_and_b32 s29, s39, 0xffff')
        A(f'    s_mov_b32 s30, {WS_DIAG + 65536 + (2 << 20)}')
        A('    s_mov_b32 s31, 0x00020000')
    c = (128 ** -0.5) * 1.4426950408889634
    A(f'    s_mov_b32 s33, 0x{f2u(c):08x}           ; scale*log2(e)')
    A('    s_mov_b32 s34, 0xffff0000')
    A(f'    v_lshlrev_b32 v{vL8}, 3, v5                ; lane*8')
    A(f'    v_lshrrev_b32 v6, 4, v5')
    A(f'    v_lshl_add_u32 v{vOut}, v6, 2, v{vQo}')
    A(f'    v_mov_b32 v{vone}, 1')
    A(f'    v_mov_b32 v{vzero}, 0')
    A(f'    v_mov_b32 v{vzero+2}, 0')
    A(f'    v_mov_b32 v{vzero+3}, 0')
    A(f'    ds_write_b64 v{vzero}, v[{vzero+2}:{vzero+3}] offset:{CNT}')
    A(f'    ds_write_b32 v{vzero}, v{vzero} offset:{PROG}')
    for e in range(8):
        A(f'    v_mov_b32 v{vacc+e}, 0')
    A(f'    v_mov_b32 v{vm}, 0xff800000')
    A(f'    v_mov_b32 v{vl}, 0')
    A(f'    s_mov_b32 s{sHead}, 0')
    A(f'    s_mov_b32 s{sCnt}, {SPH // NB}')
    A('    s_waitcnt lgkmcnt(0)')
    A('    s_barrier')
    if sampler:
        A(f'    s_cmp_eq_u32 s3, {W}')
        A('    s_cbranch_scc1 L_sampler')
    curcap[0] = procap + HPW if procap else 0
    for i in range(2, 4): lv(0, i)
    curcap[0] = procap
    for b in range(1, NB):
        A(f'    s_add_u32 s{sKo}, s{sKo}, {STEP}')
        for i in range(4): lk(b, i)
        for i in range(4): lv(b, i)
    A(f'    s_add_u32 s{sKo}, s{sKo}, {STEP}')
    A(f'    s_waitcnt vmcnt({8*NB - 6})                     ; q landed')
    curcap[0] = cap
    WKV = 4 * (2 * NB - 1)
    A('L_loop:')
    inloop[0] = True
    if tailsteps:
        A(f'    s_cmp_ge_u32 s{sKo}, {(1 << RB) - (tailsteps - NB) * STEP}')
        A('    s_cselect_b64 vcc, -1, 0')
    for b in range(NB):
        if sampler:
            A('    s_mov_b64 exec, 1')
            A(f'    ds_add_u32 v{vzero}, v{vone} offset:{PROG}')
            A('    s_mov_b64 exec, -1')
        if not cap or cap > WKV or tailsteps: A(f'    s_waitcnt vmcnt({WKV})')
        q = vq
        for i in range(4):
            A(f'    v_dot2_f32_bf16 v{vt+i}, v{KB(b,i)}, v{q}, 0')
        for w in range(1, 4):
            for i in range(4):
                A(f'    v_dot2_f32_bf16 v{vt+i}, v{KB(b,i)+w}, v{q+w}, v{vt+i}')
        lk(b, 0)
        A(f'    v_add_f32_dpp v{vt}, v{vt}, v{vt} row_ror:8 row_mask:0xf bank_mask:0x3')
        A(f'    v_add_f32_dpp v{vt+2}, v{vt+2}, v{vt+2} row_ror:8 row_mask:0xf bank_mask:0x3')
        A('    s_nop 0')
        A(f'    v_add_f32_dpp v{vt}, v{vt+1}, v{vt+1} row_ror:8 row_mask:0xf bank_mask:0xc')
        A(f'    v_add_f32_dpp v{vt+2}, v{vt+3}, v{vt+3} row_ror:8 row_mask:0xf bank_mask:0xc')
        A('    s_nop 0')
        A(f'    v_add_f32_dpp v{vw}, v{vt}, v{vt} row_ror:12 row_mask:0xf bank_mask:0x5')
        A('    s_nop 1')
        A(f'    v_add_f32_dpp v{vw}, v{vt+2}, v{vt+2} row_ror:4 row_mask:0xf bank_mask:0xa')
        A('    s_nop 0')
        lk(b, 1)
        A(f'    v_add_f32_dpp v{vw}, v{vw}, v{vw} quad_perm:[1,0,3,2]{DPP}')
        A('    s_nop 1')
        A(f'    v_add_f32_dpp v{vw}, v{vw}, v{vw} quad_perm:[2,3,0,1]{DPP}')
        A(f'    v_mul_f32 v{vw}, s33, v{vw}')
        A('    s_nop 1')
        A(f'    v_max_f32_dpp v{vx}, v{vw}, v{vw} row_ror:4{DPP}')
        A('    s_nop 0')
        lk(b, 2)
        A(f'    v_max_f32_dpp v{vx}, v{vx}, v{vx} row_ror:8{DPP}')
        A(f'    v_max_f32 v{vmn}, v{vm}, v{vx}')
        A(f'    v_sub_f32 v{val}, v{vm}, v{vmn}')
        A(f'    v_sub_f32 v{vp}, v{vw}, v{vmn}')
        A(f'    v_exp_f32 v{val}, v{val}')
        A(f'    v_exp_f32 v{vp}, v{vp}')
        A(f'    v_mov_b32 v{vm}, v{vmn}')
        A(f'    v_fma_f32 v{vl}, v{vl}, v{val}, v{vp}')
        for e in range(8):
            A(f'    v_mul_f32 v{vacc+e}, v{val}, v{vacc+e}')
        lk(b, 3)
        if not cap or cap > WKV or tailsteps: A(f'    s_waitcnt vmcnt({WKV})')
        src_lane = [0, 8, 4, 12]
        for i in range(4):
            for w in range(4):
                A(f'    v_lshlrev_b32 v{vtmp+2*w}, 16, v{VB(b,i)+w}')
                A(f'    v_and_b32 v{vtmp+2*w+1}, s34, v{VB(b,i)+w}')
            lv(b, i)
            for e in range(8):
                A(f'    v_fmac_f32_dpp v{vacc+e}, v{vp}, v{vtmp+e} row_newbcast:{src_lane[i]}{DPP}')
        A(f'    s_add_u32 s{sKo}, s{sKo}, {STEP}')
    A(f'    s_sub_u32 s{sCnt}, s{sCnt}, 1')
    A(f'    s_cmp_lg_u32 s{sCnt}, 0')
    A('    s_cbranch_scc1 L_loop')
    A(f'    v_add_f32_dpp v{vl}, v{vl}, v{vl} row_ror:4{DPP}')
    A(f'    v_mov_b32 v{vx}, v{vm}')
    A(f'    v_mov_b32 v{vw}, v{vm}')
    A(f'    v_add_f32_dpp v{vl}, v{vl}, v{vl} row_ror:8{DPP}')
    A('    s_nop 0')
    A(f'    v_permlane32_swap_b32 v{vx}, v{vw}')
    A('    s_nop 1')
    A(f'    v_max_f32 v{vx}, v{vx}, v{vw}')
    A(f'    v_mov_b32 v{vw}, v{vx}')
    A('    s_nop 1')
    A(f'    v_permlane16_swap_b32 v{vx}, v{vw}')
    A('    s_nop 1')
    A(f'    v_max_f32 v{vmn}, v{vx}, v{vw}')
    A(f'    v_sub_f32 v{val}, v{vm}, v{vmn}')
    A(f'    v_exp_f32 v{val}, v{val}')
    A(f'    s_mul_i32 s63, s{sHead}, {SL}')
    A(f'    v_mul_f32 v{vl}, v{val}, v{vl}')
    for e in range(8):
        A(f'    v_mul_f32 v{vacc+e}, v{val}, v{vacc+e}')
    A(f'    v_mov_b32 v{vx}, v{vl}')
    A('    s_lshl_b32 s64, s3, 9')
    A('    s_add_u32 s64, s64, s63')
    for k in range(4):
        A(f'    v_permlane32_swap_b32 v{vacc+k}, v{vacc+k+4}')
    A(f'    v_permlane32_swap_b32 v{vl}, v{vx}')
    A(f'    v_add_u32 v4, s64, v{vL8}')
    A('    s_lshl_b32 s64, s3, 3')
    for k in range(4):
        A(f'    v_add_f32 v{vacc+k}, v{vacc+k}, v{vacc+k+4}')
    A(f'    v_add_f32 v{vl}, v{vl}, v{vx}')
    A(f'    v_mov_b32 v{vx}, v{vl}')
    A('    s_add_u32 s64, s64, s63')
    A('    v_mov_b32 v5, s64')
    A(f'    v_permlane16_swap_b32 v{vacc}, v{vacc+2}')
    A(f'    v_permlane16_swap_b32 v{vacc+1}, v{vacc+3}')
    A(f'    v_permlane16_swap_b32 v{vl}, v{vx}')
    A(f'    s_lshl_b32 s65, s{sHead}, 2')
    A('    v_mov_b32 v6, s65')
    A(f'    v_add_f32 v{vacc}, v{vacc}, v{vacc+2}')
    A(f'    v_add_f32 v{vacc+1}, v{vacc+1}, v{vacc+3}')
    A(f'    v_add_f32 v{vmn+1}, v{vl}, v{vx}')
    A(f'    ds_write_b64 v4, v[{vacc}:{vacc+1}]')
    A(f'    ds_write_b64 v5, v[{vmn}:{vmn+1}] offset:{MLO}')
    A('    s_mov_b64 exec, 1')
    A(f'    ds_add_rtn_u32 v7, v6, v{vone} offset:{CNT}')
    A('    s_mov_b64 exec, -1')
    A('    s_waitcnt lgkmcnt(0)')
    A('    v_readfirstlane_b32 s66, v7')
    A(f'    v_add_u32 v4, s63, v{vL8}')
    A('    v_mov_b32 v5, s63')
    A(f'    s_cmp_lg_u32 s66, {W-1}')
    A('    s_cbranch_scc1 L_unit_ret')
    for e2 in range(W // 2):
        A(f'    ds_read_b128 v[{vml+4*e2}:{vml+4*e2+3}], v5 offset:{MLO+16*e2}')
    for e in range(W):
        A(f'    ds_read_b64 v[{vdat+2*e}:{vdat+2*e+1}], v4 offset:{512*e}')
    A(f'    s_waitcnt lgkmcnt({W})')
    A(f'    v_max_f32 v{vmn}, v{vml}, v{vml+2}')
    for e in range(2, W, 2):
        A(f'    v_max3_f32 v{vmn}, v{vmn}, v{vml+2*e}, v{vml+2*e+2}')
    for e in range(W):
        A(f'    v_sub_f32 v{vml+2*e}, v{vml+2*e}, v{vmn}')
    for e in range(W):
        A(f'    v_exp_f32 v{vml+2*e}, v{vml+2*e}')
    A(f'    s_lshl_b32 s64, s{sHead}, 8')
    A(f'    v_mul_f32 v{vl}, v{vml}, v{vml+1}')
    for e in range(1, W):
        A(f'    v_fmac_f32 v{vl}, v{vml+2*e}, v{vml+2*e+1}')
    A(f'    v_rcp_f32 v{vx}, v{vl}')
    A('    s_waitcnt lgkmcnt(0)')
    A(f'    v_mul_f32 v{vt}, v{vml}, v{vdat}')
    A(f'    v_mul_f32 v{vt+1}, v{vml}, v{vdat+1}')
    for e in range(1, W):
        A(f'    v_fmac_f32 v{vt}, v{vml+2*e}, v{vdat+2*e}')
        A(f'    v_fmac_f32 v{vt+1}, v{vml+2*e}, v{vdat+2*e+1}')
    A(f'    v_mul_f32 v{vt}, v{vt}, v{vx}')
    A(f'    v_mul_f32 v{vt+1}, v{vt+1}, v{vx}')
    A(f'    v_cvt_pk_bf16_f32 v7, v{vt}, v{vt+1}')
    A(f'    buffer_store_dword v7, v{vOut}, s[24:27], s64 offen')
    if diag:
        A('    s_memrealtime s[68:69]')
        A('    s_getreg_b32 s62, hwreg(HW_REG_XCC_ID)')
        A('    s_waitcnt lgkmcnt(0)')
        A('    s_or_b32 s62, s62, 0x100')
        A(f'    v_mov_b32 v{vml}, s70')
        A(f'    v_mov_b32 v{vml+1}, s62')
        A(f'    v_mov_b32 v{vml+2}, s68')
        A(f'    v_mov_b32 v{vml+3}, s68')
        A(f'    s_lshl_b32 s64, s2, {4 + HPW - 1}')
        A(f'    s_lshl_b32 s65, s{sHead}, 4')
        A('    s_add_u32 s64, s64, s65')
        A(f'    s_add_u32 s64, s64, {WS_DIAG}')
        A('    s_mov_b64 exec, 1')
        A(f'    buffer_store_dwordx4 v[{vml}:{vml+3}], v{vzero}, s[28:31], s64 offen')
        A('    s_mov_b64 exec, -1')
    if dbg:
        A('    s_cmp_ge_u32 s2, 8')
        A('    s_cbranch_scc1 L_unit_ret')
        A('    s_memrealtime s[68:69]')
        A('    s_waitcnt lgkmcnt(0)')
        A('    s_sub_u32 s62, s68, s70')
        A('    s_lshl_b32 s64, s2, 3')
        A(f'    s_lshl_b32 s65, s{sHead}, 2')
        A('    s_add_u32 s64, s64, s65')
        A('    s_mov_b64 exec, 1')
        A(f'    v_mov_b32 v{vml}, s62')
        A(f'    v_mov_b32 v{vml+3}, s64')
        A(f'    global_store_dword v{vml+3}, v{vml}, s[36:37]')
        A('    s_mov_b64 exec, -1')
    A('L_unit_ret:')
    if HPW == 2:
        A(f'    s_cmp_lg_u32 s{sHead}, 0')
        A('    s_cbranch_scc1 L_end')
        A(f'    s_mov_b32 s{sHead}, 1')
        A(f'    s_mov_b32 s{sCnt}, {SPH // NB}')
        for e in range(8):
            A(f'    v_mov_b32 v{vacc+e}, 0')
        A(f'    v_mov_b32 v{vm}, 0xff800000')
        A(f'    v_mov_b32 v{vl}, 0')
        for e in range(4):
            A(f'    v_mov_b32 v{vq+e}, v{vq+4+e}')
        A('    s_branch L_loop')
    if sampler:
        A('    s_endpgm')
        A('L_sampler:')
        A(f'    s_lshl_b32 s82, s2, {11 + HPW - 1}')
        A(f'    s_add_u32 s82, s82, {WS_DIAG + 65536}')
        A(f'    s_add_u32 s83, s82, {2048 * HPW}')
        A('L_s_loop:')
        A(f'    ds_read_b32 v5, v{vzero} offset:{PROG}')
        A('    s_memrealtime s[84:85]')
        A('    s_waitcnt lgkmcnt(0)')
        A('    s_cmp_ge_u32 s82, s83')
        A('    s_cbranch_scc1 L_end')
        A('    v_mov_b32 v14, s84')
        A('    v_mov_b32 v15, v5')
        A('    s_mov_b64 exec, 1')
        A(f'    buffer_store_dwordx2 v[14:15], v{vzero}, s[28:31], s82 offen')
        A('    s_mov_b64 exec, -1')
        A('    s_add_u32 s82, s82, 8')
        A('    v_readfirstlane_b32 s62, v5')
        A(f'    s_cmp_ge_u32 s62, {128 * HPW}')
        A('    s_cbranch_scc1 L_end')
        A(f'    s_sleep {8 if HPW == 2 else 14}')
        A('    s_branch L_s_loop')
    A('L_end:')
    A('    s_endpgm')
    A('L_code_end:')
    A('    s_endpgm')
    A('.section .rodata,"a"')
    A('.p2align 6')
    A(f'.amdhsa_kernel {NAME}')
    A(f'  .amdhsa_next_free_vgpr {nv}')
    A('  .amdhsa_next_free_sgpr 88')
    A(f'  .amdhsa_accum_offset {(nv + 3) // 4 * 4}')
    A('  .amdhsa_group_segment_fixed_size 0')
    A('  .amdhsa_kernarg_size 48')
    A('  .amdhsa_user_sgpr_count 2')
    A('  .amdhsa_user_sgpr_kernarg_segment_ptr 1')
    A('  .amdhsa_system_sgpr_workgroup_id_x 1')
    A('  .amdhsa_float_denorm_mode_32 3')
    A('.end_amdhsa_kernel')
    return '\n'.join(L) + '\n'

if __name__ == '__main__':
    ap = argparse.ArgumentParser()
    ap.add_argument('out')
    ap.add_argument('--G', type=int, default=256)
    ap.add_argument('--W', type=int, default=4)
    ap.add_argument('--NB', type=int, default=2)
    ap.add_argument('--cap', type=int, default=6)
    ap.add_argument('--procap', type=int, default=None)
    ap.add_argument('--policy', default='nt')
    ap.add_argument('--diag', action='store_true')
    ap.add_argument('--sampler', action='store_true')
    ap.add_argument('--codepf', action='store_true')
    ap.add_argument('--tail', type=int, default=0)
    ap.add_argument('--dbg', action='store_true')
    a = ap.parse_args()
    open(a.out, 'w').write(gen(a.G, a.W, a.NB, a.cap, a.procap, a.policy, a.diag or a.sampler, a.sampler, a.codepf, tailsteps=a.tail, dbg=a.dbg))
```

```python
import sys, argparse, struct

def f2u(x):
    return struct.unpack('<I', struct.pack('<f', x))[0]

HEADER = open('standalone__mha_softmax__sampling.s.ref').read().split('; Override launch')[0]
NAME = 'standalone__mha_softmax__sampling_kernel'

def gen(W=4, NBUF=4, cap=6, capv=None, first=6, policy='nt', diag=False, sampler=False, codepf=False, tail=0):
    L = []
    A = L.append
    G = 256
    GPH = 128 // W
    STEP = W * 4096
    assert GPH % NBUF == 0
    if capv is None: capv = cap
    SCW = 2 * GPH * 256
    SC = W * SCW
    SL = W * 512 + 128
    MLO = W * 512
    CB = 2 * SL
    CNT, PROG = CB, CB + 16
    lds = max(81920 + 1024, SC + CB + 64)
    WS_DIAG = 8 << 20
    REG = 1 << 20
    pol = (' ' + policy) if policy else ''
    DPP = ' row_mask:0xf bank_mask:0xf'
    vOff, vQo, vL8 = 1, 2, 3
    vacc, vmx, vl, vt, vw, vx, vmn, vp, vone = 8, 16, 17, 18, 22, 23, 24, 26, 27
    vtmp = 28
    vcb, vOut, vLds, vneg = 36, 37, 38, 39
    vq = 40
    vM = 48
    vsc = 52
    vml = 60
    vdat = vml + 2 * W
    vbuf = (vdat + 2 * W + 3) // 4 * 4
    def B(b, i): return vbuf + b * 16 + i * 4
    nv = vbuf + NBUF * 16
    NW = W + (1 if sampler else 0)
    sKo, sCnt, sHead = 44, 45, 46
    A(HEADER.rstrip('\n'))
    A(f'; @launch grid=({G},1,1) block=({NW*64},1,1) lds={lds}')
    A('.amdgcn_target "amdgcn-amd-amdhsa--gfx950"')
    A('.text')
    A(f'.globl {NAME}')
    A('.p2align 8')
    A(f'.type {NAME},@function')
    A(f'{NAME}:')
    if diag:
        A('    s_memrealtime s[70:71]')
    A('    s_load_dwordx4 s[4:7], s[0:1], 0        ; q, k')
    A('    s_load_dwordx4 s[8:11], s[0:1], 16      ; v, out')
    if diag:
        A('    s_load_dwordx2 s[38:39], s[0:1], 40     ; ws')
    A(f'    s_cmp_ge_u32 s2, {G}')
    A('    s_cbranch_scc1 L_end')
    A('    v_lshrrev_b32 v4, 6, v0')
    A('    v_and_b32 v5, 63, v0                    ; lane')
    A('    v_readfirstlane_b32 s3, v4')
    A(f'    v_lshlrev_b32 v{vOff}, 4, v5')
    A(f'    v_lshl_add_u32 v{vOff}, v4, 12, v{vOff}')
    A(f'    v_and_b32 v{vQo}, 15, v0')
    A(f'    v_lshlrev_b32 v{vQo}, 4, v{vQo}                ; (lane%16)*16')
    A('    s_lshl_b32 s50, s2, 20')
    A('    s_lshl_b32 s51, s2, 9')
    A(f'    s_mov_b32 s14, {REG}')
    A('    s_mov_b32 s15, 0x00020000')
    A('    s_mov_b32 s22, 512')
    A('    s_mov_b32 s23, 0x00020000')
    A(f'    s_mov_b32 s{sKo}, 0')
    A(f'    s_mov_b32 s47, {STEP}')
    A('    s_waitcnt lgkmcnt(0)')
    A('    s_add_u32 s12, s6, s50')
    A('    s_addc_u32 s13, s7, 0')
    A('    s_and_b32 s13, s13, 0xffff')
    if sampler:
        A(f'    s_cmp_eq_u32 s3, {W}')
        A('    s_cbranch_scc1 L_skip_first')
    curcap = [0]
    skipcap = [False]
    ncw = [0]
    def capwait():
        if not curcap[0]: return
        if skipcap[0]:
            k = ncw[0]; ncw[0] += 1
            A(f'    s_cbranch_vccnz L_cw{k}')
            A(f'    s_waitcnt vmcnt({curcap[0]-1})')
            A(f'L_cw{k}:')
        else:
            A(f'    s_waitcnt vmcnt({curcap[0]-1})')
    def ld(b, i, so=sKo):
        capwait()
        A(f'    buffer_load_dwordx4 v[{B(b,i)}:{B(b,i)+3}], v{vOff}, s[12:15], s{so} offen offset:{i*1024}{pol}')
    assert 4 <= first <= 8
    for n in range(first):
        ld(n // 4, n % 4, sKo if n < 4 else 47)
    if sampler: A('L_skip_first:')
    A('    s_add_u32 s20, s4, s51')
    A('    s_addc_u32 s21, s5, 0')
    A('    s_and_b32 s21, s21, 0xffff')
    for h in range(2):
        A(f'    buffer_load_dwordx4 v[{vq+4*h}:{vq+4*h+3}], v{vQo}, s[20:23], 0 offen offset:{256*h}')
    if codepf:
        A('    s_getpc_b64 s[62:63]')
        A('L_pfbase:')
        A('    v_lshlrev_b32 v6, 6, v0')
        A('    v_cmp_gt_u32 vcc, L_code_end-L_pfbase, v6')
        A('    s_and_saveexec_b64 s[64:65], vcc')
        A('    s_cbranch_execz L_nopf')
        A('    global_load_dword v7, v6, s[62:63]')
        A('L_nopf:')
        A('    s_mov_b64 exec, s[64:65]')
    A('    s_add_u32 s16, s8, s50')
    A('    s_addc_u32 s17, s9, 0')
    A('    s_and_b32 s17, s17, 0xffff')
    A('    s_add_u32 s24, s10, s51')
    A('    s_addc_u32 s25, s11, 0')
    A('    s_and_b32 s25, s25, 0xffff')
    A('    s_mov_b32 s26, 512')
    A('    s_mov_b32 s27, 0x00020000')
    if diag:
        A('    s_mov_b32 s28, s38')
        A('    s_and_b32 s29, s39, 0xffff')
        A(f'    s_mov_b32 s30, {WS_DIAG + 65536 + (2 << 20)}')
        A('    s_mov_b32 s31, 0x00020000')
    c = (128 ** -0.5) * 1.4426950408889634
    A(f'    s_mov_b32 s33, 0x{f2u(c):08x}           ; scale*log2(e)')
    A('    s_mov_b32 s34, 0xffff0000')
    A(f'    v_lshlrev_b32 v{vL8}, 3, v5                ; lane*8')
    A(f'    v_lshrrev_b32 v6, 4, v5')
    A(f'    v_lshl_add_u32 v{vOut}, v6, 2, v{vQo}')
    A(f'    v_lshlrev_b32 v{vLds}, 2, v5')
    A(f'    v_lshl_add_u32 v{vLds}, v4, {SCW.bit_length()-1}, v{vLds}')
    A(f'    v_mov_b32 v{vone}, 1')
    A(f'    v_mov_b32 v{vcb}, {SC}')
    A('    v_mov_b32 v6, 0')
    A('    v_mov_b32 v7, 0' if not codepf else '    s_nop 0')
    A(f'    ds_write_b32 v{vcb}, v6 offset:{CNT}')
    A(f'    ds_write_b32 v{vcb}, v6 offset:{CNT+4}')
    A(f'    ds_write_b32 v{vcb}, v6 offset:{PROG}')
    A(f'    v_mov_b32 v{vmx}, 0xff800000')
    A(f'    s_mov_b32 s{sHead}, 0')
    A(f'    s_mov_b32 s{sCnt}, {GPH // NBUF}')
    A('    s_waitcnt lgkmcnt(0)')
    A('    s_barrier')
    if sampler:
        A(f'    s_cmp_eq_u32 s3, {W}')
        A('    s_cbranch_scc1 L_sampler')
    curcap[0] = cap
    for n in range(first, 4 * NBUF):
        if n % 4 == 0 or n == first:
            A(f'    s_mov_b32 s{sKo}, {(n // 4) * STEP}')
        ld(n // 4, n % 4)
    A(f'    s_mov_b32 s{sKo}, {NBUF * STEP}')
    A(f'    s_waitcnt vmcnt({4*NBUF - first})                     ; q landed')
    WD = 4 * (NBUF - 1)
    def prog():
        if sampler:
            A('    s_mov_b64 exec, 1')
            A(f'    ds_add_u32 v{vcb}, v{vone} offset:{PROG}')
            A('    s_mov_b64 exec, -1')
    A('L_kloop:')
    A(f'    s_cmp_lt_u32 s{sKo}, {REG}')
    A('    s_cbranch_scc1 L_kgo')
    A('    s_mov_b32 s12, s16')
    A('    s_mov_b32 s13, s17')
    A(f'    s_mov_b32 s{sKo}, 0')
    A('L_kgo:')
    for b in range(NBUF):
        prog()
        if not cap or cap > WD: A(f'    s_waitcnt vmcnt({WD})')
        for i in range(4):
            A(f'    v_dot2_f32_bf16 v{vt+i}, v{B(b,i)}, v{vq}, 0')
        for w in range(1, 4):
            for i in range(4):
                A(f'    v_dot2_f32_bf16 v{vt+i}, v{B(b,i)+w}, v{vq+w}, v{vt+i}')
        ld(b, 0)
        A(f'    v_add_f32_dpp v{vt}, v{vt}, v{vt} row_ror:8 row_mask:0xf bank_mask:0x3')
        A(f'    v_add_f32_dpp v{vt+2}, v{vt+2}, v{vt+2} row_ror:8 row_mask:0xf bank_mask:0x3')
        A('    s_nop 0')
        A(f'    v_add_f32_dpp v{vt}, v{vt+1}, v{vt+1} row_ror:8 row_mask:0xf bank_mask:0xc')
        A(f'    v_add_f32_dpp v{vt+2}, v{vt+3}, v{vt+3} row_ror:8 row_mask:0xf bank_mask:0xc')
        ld(b, 1)
        A(f'    v_add_f32_dpp v{vw}, v{vt}, v{vt} row_ror:12 row_mask:0xf bank_mask:0x5')
        A('    s_nop 1')
        A(f'    v_add_f32_dpp v{vw}, v{vt+2}, v{vt+2} row_ror:4 row_mask:0xf bank_mask:0xa')
        A('    s_nop 0')
        ld(b, 2)
        A(f'    v_add_f32_dpp v{vw}, v{vw}, v{vw} quad_perm:[1,0,3,2]{DPP}')
        A('    s_nop 0')
        ld(b, 3)
        A(f'    v_add_f32_dpp v{vw}, v{vw}, v{vw} quad_perm:[2,3,0,1]{DPP}')
        A(f'    s_add_u32 s{sKo}, s{sKo}, {STEP}')
        A(f'    ds_write_b32 v{vLds}, v{vw} offset:{256*b}')
        A(f'    v_max_f32 v{vmx}, v{vmx}, v{vw}')
    A(f'    v_add_u32 v{vLds}, {256*NBUF}, v{vLds}')
    A(f'    s_sub_u32 s{sCnt}, s{sCnt}, 1')
    A(f'    s_cmp_lg_u32 s{sCnt}, 0')
    A('    s_cbranch_scc1 L_kloop')
    A(f'    v_max_f32_dpp v{vmx}, v{vmx}, v{vmx} row_ror:4{DPP}')
    A(f'    s_mov_b32 s{sCnt}, {GPH // NBUF}')
    A('    s_nop 0')
    A(f'    v_max_f32_dpp v{vmx}, v{vmx}, v{vmx} row_ror:8{DPP}')
    A(f'    v_mov_b32 v{vx}, v{vmx}')
    A('    s_nop 1')
    A(f'    v_permlane32_swap_b32 v{vx}, v{vmx}')
    A('    s_nop 1')
    A(f'    v_max_f32 v{vmx}, v{vx}, v{vmx}')
    A(f'    v_mov_b32 v{vx}, v{vmx}')
    A('    s_nop 1')
    A(f'    v_permlane16_swap_b32 v{vx}, v{vmx}')
    A('    s_nop 1')
    A(f'    v_max_f32 v{vmx}, v{vx}, v{vmx}')
    A(f'    v_mul_f32 v{vM+1}, s33, v{vmx}')
    A(f'    s_cmp_lg_u32 s{sHead}, 0')
    A('    s_cbranch_scc1 L_vstart')
    A(f'    s_mov_b32 s{sHead}, 1')
    A(f'    v_mov_b32 v{vM}, v{vM+1}')
    A(f'    v_mov_b32 v{vmx}, 0xff800000')
    for e in range(4):
        A(f'    v_mov_b32 v{vq+e}, v{vq+4+e}')
    A('    s_branch L_kloop')
    A('L_vstart:')
    A(f'    v_subrev_u32 v{vLds}, {SCW}, v{vLds}')
    A(f'    s_mov_b32 s{sHead}, 0')
    A(f'    ds_read_b32 v{vsc}, v{vLds}')
    A('L_vhead:')
    A(f'    v_sub_f32 v{vneg}, 0, v{vM}')
    for e in range(8):
        A(f'    v_mov_b32 v{vacc+e}, 0')
    A(f'    v_mov_b32 v{vl}, 0')
    curcap[0] = capv
    skipcap[0] = True
    A('L_vloop:')
    A(f'    s_cmp_ge_u32 s{sKo}, {REG - tail * STEP}')
    A('    s_cselect_b64 vcc, -1, 0')
    src_lane = [0, 8, 4, 12]
    for b in range(NBUF):
        prog()
        A(f'    ds_read_b32 v{vsc + (b+1) % NBUF}, v{vLds} offset:{256*(b+1)}')
        A('    s_waitcnt lgkmcnt(1)')
        A(f'    v_fma_f32 v{vp}, v{vsc+b}, s33, v{vneg}')
        A(f'    v_exp_f32 v{vp}, v{vp}')
        for i in range(4):
            A(f'    s_waitcnt vmcnt({4*NBUF-1})')
            for w in range(4):
                A(f'    v_lshlrev_b32 v{vtmp+2*w}, 16, v{B(b,i)+w}')
                A(f'    v_and_b32 v{vtmp+2*w+1}, s34, v{B(b,i)+w}')
            ld(b, i)
            for e in range(8):
                A(f'    v_fmac_f32_dpp v{vacc+e}, v{vp}, v{vtmp+e} row_newbcast:{src_lane[i]}{DPP}')
        A(f'    v_add_f32 v{vl}, v{vl}, v{vp}')
        A(f'    s_add_u32 s{sKo}, s{sKo}, {STEP}')
    A(f'    v_add_u32 v{vLds}, {256*NBUF}, v{vLds}')
    A(f'    s_sub_u32 s{sCnt}, s{sCnt}, 1')
    A(f'    s_cmp_lg_u32 s{sCnt}, 0')
    A('    s_cbranch_scc1 L_vloop')
    A(f'    s_mul_i32 s63, s{sHead}, {SL}')
    A(f'    s_add_u32 s63, s63, {SC}')
    A(f'    v_add_f32_dpp v{vl}, v{vl}, v{vl} row_ror:4{DPP}')
    for k in range(4):
        A(f'    v_permlane32_swap_b32 v{vacc+k}, v{vacc+k+4}')
    A(f'    v_add_f32_dpp v{vl}, v{vl}, v{vl} row_ror:8{DPP}')
    A('    s_lshl_b32 s64, s3, 9')
    A('    s_add_u32 s64, s64, s63')
    for k in range(4):
        A(f'    v_add_f32 v{vacc+k}, v{vacc+k}, v{vacc+k+4}')
    A(f'    v_mov_b32 v{vx}, v{vl}')
    A(f'    v_add_u32 v4, s64, v{vL8}')
    A('    s_lshl_b32 s64, s3, 3')
    A(f'    v_permlane16_swap_b32 v{vacc}, v{vacc+2}')
    A(f'    v_permlane16_swap_b32 v{vacc+1}, v{vacc+3}')
    A(f'    v_permlane32_swap_b32 v{vl}, v{vx}')
    A('    s_add_u32 s64, s64, s63')
    A('    v_mov_b32 v5, s64')
    A(f'    v_add_f32 v{vacc}, v{vacc}, v{vacc+2}')
    A(f'    v_add_f32 v{vacc+1}, v{vacc+1}, v{vacc+3}')
    A(f'    v_add_f32 v{vl}, v{vl}, v{vx}')
    A(f'    ds_write_b64 v4, v[{vacc}:{vacc+1}]')
    A(f'    v_mov_b32 v{vx}, v{vl}')
    A(f'    v_mov_b32 v{vmn}, v{vM}')
    A(f'    s_lshl_b32 s65, s{sHead}, 2')
    A(f'    v_permlane16_swap_b32 v{vl}, v{vx}')
    A(f'    v_add_u32 v6, s65, v{vcb}')
    A('    s_nop 0')
    A(f'    v_add_f32 v{vmn+1}, v{vl}, v{vx}')
    A(f'    ds_write_b64 v5, v[{vmn}:{vmn+1}] offset:{MLO}')
    A('    s_mov_b64 exec, 1')
    A(f'    ds_add_rtn_u32 v7, v6, v{vone} offset:{CNT}')
    A('    s_mov_b64 exec, -1')
    A('    s_waitcnt lgkmcnt(0)')
    A('    v_readfirstlane_b32 s66, v7')
    A(f'    v_add_u32 v4, s63, v{vL8}')
    A('    v_mov_b32 v5, s63')
    A(f'    s_cmp_lg_u32 s66, {W-1}')
    A('    s_cbranch_scc1 L_unit_ret')
    for e2 in range(W // 2):
        A(f'    ds_read_b128 v[{vml+4*e2}:{vml+4*e2+3}], v5 offset:{MLO+16*e2}')
    for e in range(W):
        A(f'    ds_read_b64 v[{vdat+2*e}:{vdat+2*e+1}], v4 offset:{512*e}')
    A(f'    s_waitcnt lgkmcnt({W})')
    A(f'    v_max_f32 v{vmn}, v{vml}, v{vml+2}')
    for e in range(2, W, 2):
        A(f'    v_max3_f32 v{vmn}, v{vmn}, v{vml+2*e}, v{vml+2*e+2}')
    for e in range(W):
        A(f'    v_sub_f32 v{vml+2*e}, v{vml+2*e}, v{vmn}')
    for e in range(W):
        A(f'    v_exp_f32 v{vml+2*e}, v{vml+2*e}')
    A(f'    s_lshl_b32 s64, s{sHead}, 8')
    A(f'    v_mul_f32 v{vl}, v{vml}, v{vml+1}')
    for e in range(1, W):
        A(f'    v_fmac_f32 v{vl}, v{vml+2*e}, v{vml+2*e+1}')
    A(f'    v_rcp_f32 v{vx}, v{vl}')
    A('    s_waitcnt lgkmcnt(0)')
    A(f'    v_mul_f32 v{vt}, v{vml}, v{vdat}')
    A(f'    v_mul_f32 v{vt+1}, v{vml}, v{vdat+1}')
    for e in range(1, W):
        A(f'    v_fmac_f32 v{vt}, v{vml+2*e}, v{vdat+2*e}')
        A(f'    v_fmac_f32 v{vt+1}, v{vml+2*e}, v{vdat+2*e+1}')
    A(f'    v_mul_f32 v{vt}, v{vt}, v{vx}')
    A(f'    v_mul_f32 v{vt+1}, v{vt+1}, v{vx}')
    A(f'    v_cvt_pk_bf16_f32 v7, v{vt}, v{vt+1}')
    A(f'    buffer_store_dword v7, v{vOut}, s[24:27], s64 offen')
    if diag:
        A('    s_memrealtime s[68:69]')
        A('    s_getreg_b32 s62, hwreg(HW_REG_XCC_ID)')
        A('    s_waitcnt lgkmcnt(0)')
        A('    s_or_b32 s62, s62, 0x100')
        A(f'    v_mov_b32 v{vml}, s70')
        A(f'    v_mov_b32 v{vml+1}, s62')
        A(f'    v_mov_b32 v{vml+2}, s68')
        A(f'    v_mov_b32 v{vml+3}, s68')
        A('    v_mov_b32 v6, 0')
        A('    s_lshl_b32 s64, s2, 5')
        A(f'    s_lshl_b32 s65, s{sHead}, 4')
        A('    s_add_u32 s64, s64, s65')
        A(f'    s_add_u32 s64, s64, {WS_DIAG}')
        A('    s_mov_b64 exec, 1')
        A(f'    buffer_store_dwordx4 v[{vml}:{vml+3}], v6, s[28:31], s64 offen')
        A('    s_mov_b64 exec, -1')
    A('L_unit_ret:')
    A(f'    s_cmp_lg_u32 s{sHead}, 0')
    A('    s_cbranch_scc1 L_end')
    A(f'    s_mov_b32 s{sHead}, 1')
    A(f'    s_mov_b32 s{sCnt}, {GPH // NBUF}')
    A(f'    v_mov_b32 v{vM}, v{vM+1}')
    A('    s_branch L_vhead')
    if sampler:
        A('L_sampler:')
        A('    s_lshl_b32 s82, s2, 12')
        A(f'    s_add_u32 s82, s82, {WS_DIAG + 65536}')
        A('    s_add_u32 s83, s82, 4096')
        A('    v_mov_b32 v6, 0')
        A('L_s_loop:')
        A(f'    ds_read_b32 v5, v{vcb} offset:{PROG}')
        A('    s_memrealtime s[84:85]')
        A('    s_waitcnt lgkmcnt(0)')
        A('    s_cmp_ge_u32 s82, s83')
        A('    s_cbranch_scc1 L_end')
        A('    v_mov_b32 v14, s84')
        A('    v_mov_b32 v15, v5')
        A('    s_mov_b64 exec, 1')
        A('    buffer_store_dwordx2 v[14:15], v6, s[28:31], s82 offen')
        A('    s_mov_b64 exec, -1')
        A('    s_add_u32 s82, s82, 8')
        A('    v_readfirstlane_b32 s62, v5')
        A('    s_cmp_ge_u32 s62, 512')
        A('    s_cbranch_scc1 L_end')
        A('    s_sleep 8')
        A('    s_branch L_s_loop')
    A('L_end:')
    A('    s_endpgm')
    A('L_code_end:')
    A('    s_endpgm')
    A('.section .rodata,"a"')
    A('.p2align 6')
    A(f'.amdhsa_kernel {NAME}')
    A(f'  .amdhsa_next_free_vgpr {nv}')
    A('  .amdhsa_next_free_sgpr 88')
    A(f'  .amdhsa_accum_offset {(nv + 3) // 4 * 4}')
    A('  .amdhsa_group_segment_fixed_size 0')
    A('  .amdhsa_kernarg_size 48')
    A('  .amdhsa_user_sgpr_count 2')
    A('  .amdhsa_user_sgpr_kernarg_segment_ptr 1')
    A('  .amdhsa_system_sgpr_workgroup_id_x 1')
    A('  .amdhsa_float_denorm_mode_32 3')
    A('.end_amdhsa_kernel')
    return '\n'.join(L) + '\n'

if __name__ == '__main__':
    ap = argparse.ArgumentParser()
    ap.add_argument('out')
    ap.add_argument('--W', type=int, default=4)
    ap.add_argument('--NBUF', type=int, default=4)
    ap.add_argument('--cap', type=int, default=6)
    ap.add_argument('--capv', type=int, default=None)
    ap.add_argument('--first', type=int, default=6)
    ap.add_argument('--policy', default='nt')
    ap.add_argument('--diag', action='store_true')
    ap.add_argument('--sampler', action='store_true')
    ap.add_argument('--codepf', action='store_true')
    ap.add_argument('--tail', type=int, default=0)
    a = ap.parse_args()
    open(a.out, 'w').write(gen(a.W, a.NBUF, a.cap, a.capv, a.first, a.policy, a.diag or a.sampler, a.sampler, a.codepf, a.tail))
```

```python
import sys, argparse, struct

def f2u(x):
    return struct.unpack('<I', struct.pack('<f', x))[0]

HEADER = open('standalone__mha_softmax__sampling.s.ref').read().split('; Override launch')[0]
NAME = 'standalone__mha_softmax__sampling_kernel'

def gen(W=4, NBUF=4, cap=6, capv=None, first=6, policy='nt', diag=False, sampler=False, codepf=False, tail=0, spread=False, procap=None, touch=False, opol='', compact=False):
    L = []
    A = L.append
    G = 256
    GPH = 128 // W
    STEP = W * 4096
    assert GPH % NBUF == 0
    if capv is None: capv = cap
    SCW = 2 * GPH * 256
    SC = W * SCW
    SL = W * 512 + 128
    MLO = W * 512
    CB = 2 * SL
    CNT, PROG = CB, CB + 16
    lds = max(81920 + 1024, SC + CB + 64)
    WS_DIAG = 8 << 20
    REG = 1 << 20
    pol = (' ' + policy) if policy else ''
    DPP = ' row_mask:0xf bank_mask:0xf'
    vOff, vQo, vL8 = 1, 2, 3
    vacc, vmx, vl, vt, vw, vx, vmn, vp, vone = 8, 16, 17, 18, 22, 23, 24, 26, 27
    vtmp = 28
    vcb, vOut, vLds, vneg = 36, 37, 38, 39
    vq = 40
    vM = 48
    vsc = 52
    vO4 = 56
    vml = 60
    vdat = vml + 2 * W
    vbuf = (vdat + 2 * W + 3) // 4 * 4
    def B(b, i): return vbuf + b * 16 + i * 4
    nv = vbuf + NBUF * 16
    NW = W + (1 if sampler else 0)
    sKo, sCnt, sHead = 44, 45, 46
    A(HEADER.rstrip('\n'))
    A(f'; @launch grid=({G},1,1) block=({NW*64},1,1) lds={lds}')
    A('.amdgcn_target "amdgcn-amd-amdhsa--gfx950"')
    A('.text')
    A(f'.globl {NAME}')
    A('.p2align 8')
    A(f'.type {NAME},@function')
    A(f'{NAME}:')
    if diag:
        A('    s_memrealtime s[70:71]')
    if compact:
        assert not sampler and not spread
        A('    s_load_dwordx4 s[4:7], s[0:1], 0        ; q, k')
        A('    v_and_b32 v5, 63, v0                    ; lane')
        A('    v_lshrrev_b32 v4, 6, v0')
        A(f'    v_lshlrev_b32 v{vOff}, 4, v5')
        A(f'    v_lshl_add_u32 v{vOff}, v4, 12, v{vOff}')
        A('    s_lshl_b32 s50, s2, 20')
        A('    s_lshr_b32 s3, s2, 8')
        A('    s_cbranch_scc1 L_end')
        A('    s_lshl_b32 s14, 1, 20')
        A('    s_mov_b32 s15, 0x00020000')
        A('    s_waitcnt lgkmcnt(0)')
        A('    s_add_u32 s12, s6, s50')
        A('    s_addc_u32 s13, s7, 0')
        A('    s_and_b32 s13, s13, 0xffff')
    else:
        A('    s_load_dwordx4 s[4:7], s[0:1], 0        ; q, k')
        A('    s_load_dwordx4 s[8:11], s[0:1], 16      ; v, out')
        if diag:
            A('    s_load_dwordx2 s[38:39], s[0:1], 40     ; ws')
        A(f'    s_cmp_ge_u32 s2, {G}')
        A('    s_cbranch_scc1 L_end')
        A('    v_lshrrev_b32 v4, 6, v0')
        A('    v_and_b32 v5, 63, v0                    ; lane')
        A('    v_readfirstlane_b32 s3, v4')
        A(f'    v_lshlrev_b32 v{vOff}, 4, v5')
        if spread:
            A(f'    v_lshlrev_b32 v{vO4}, 4, v0')
            for i in range(1, 4):
                A(f'    v_add_u32 v{vO4+i}, {i * W * 1024}, v{vO4}')
        else:
            A(f'    v_lshl_add_u32 v{vOff}, v4, 12, v{vOff}')
        A(f'    v_and_b32 v{vQo}, 15, v0')
        A(f'    v_lshlrev_b32 v{vQo}, 4, v{vQo}                ; (lane%16)*16')
        A('    s_lshl_b32 s50, s2, 20')
        A('    s_lshl_b32 s51, s2, 9')
        A(f'    s_mov_b32 s14, {REG}')
        A('    s_mov_b32 s15, 0x00020000')
        A('    s_mov_b32 s22, 512')
        A('    s_mov_b32 s23, 0x00020000')
        A(f'    s_mov_b32 s{sKo}, 0')
        A(f'    s_mov_b32 s47, {STEP}')
        A('    s_waitcnt lgkmcnt(0)')
        A('    s_add_u32 s12, s6, s50')
        A('    s_addc_u32 s13, s7, 0')
        A('    s_and_b32 s13, s13, 0xffff')
    if sampler:
        A(f'    s_cmp_eq_u32 s3, {W}')
        A('    s_cbranch_scc1 L_skip_first')
    curcap = [0]
    skipcap = [False]
    ncw = [0]
    def capwait():
        if not curcap[0]: return
        if skipcap[0]:
            k = ncw[0]; ncw[0] += 1
            A(f'    s_cbranch_vccnz L_cw{k}')
            A(f'    s_waitcnt vmcnt({curcap[0]-1})')
            A(f'L_cw{k}:')
        else:
            A(f'    s_waitcnt vmcnt({curcap[0]-1})')
    def ld(b, i, so=sKo):
        capwait()
        if spread:
            A(f'    buffer_load_dwordx4 v[{B(b,i)}:{B(b,i)+3}], v{vO4+i}, s[12:15], s{so} offen{pol}')
        else:
            A(f'    buffer_load_dwordx4 v[{B(b,i)}:{B(b,i)+3}], v{vOff}, s[12:15], s{so} offen offset:{i*1024}{pol}')
    assert 4 <= first <= 8
    for n in range(first):
        if compact and n < 4:
            A(f'    buffer_load_dwordx4 v[{B(0,n)}:{B(0,n)+3}], v{vOff}, s[12:15], 0 offen offset:{n*1024}{pol}')
            continue
        if compact and n == 4:
            A(f'    s_movk_i32 s47, {STEP}')
        ld(n // 4, n % 4, sKo if n < 4 else 47)
    if compact:
        A('    s_load_dwordx4 s[8:11], s[0:1], 16      ; v, out')
        if diag:
            A('    s_load_dwordx2 s[38:39], s[0:1], 40     ; ws')
        A('    v_readfirstlane_b32 s3, v4')
        A(f'    v_and_b32 v{vQo}, 15, v0')
        A(f'    v_lshlrev_b32 v{vQo}, 4, v{vQo}                ; (lane%16)*16')
        A('    s_lshl_b32 s51, s2, 9')
        A('    s_mov_b32 s22, 512')
        A('    s_mov_b32 s23, 0x00020000')
    if sampler: A('L_skip_first:')
    A('    s_add_u32 s20, s4, s51')
    A('    s_addc_u32 s21, s5, 0')
    A('    s_and_b32 s21, s21, 0xffff')
    for h in range(2):
        A(f'    buffer_load_dwordx4 v[{vq+4*h}:{vq+4*h+3}], v{vQo}, s[20:23], 0 offen offset:{256*h}')
    if codepf:
        A('    s_getpc_b64 s[62:63]')
        A('L_pfbase:')
        A('    v_lshlrev_b32 v6, 6, v0')
        A('    v_cmp_gt_u32 vcc, L_code_end-L_pfbase, v6')
        A('    s_and_saveexec_b64 s[64:65], vcc')
        A('    s_cbranch_execz L_nopf')
        A('    global_load_dword v7, v6, s[62:63]')
        A('L_nopf:')
        A('    s_mov_b64 exec, s[64:65]')
    if compact: A('    s_waitcnt lgkmcnt(0)')
    A('    s_add_u32 s16, s8, s50')
    A('    s_addc_u32 s17, s9, 0')
    A('    s_and_b32 s17, s17, 0xffff')
    if touch:
        A('    s_load_dword s62, s[16:17], 0')
    A('    s_add_u32 s24, s10, s51')
    A('    s_addc_u32 s25, s11, 0')
    A('    s_and_b32 s25, s25, 0xffff')
    A('    s_mov_b32 s26, 512')
    A('    s_mov_b32 s27, 0x00020000')
    if diag:
        A('    s_mov_b32 s28, s38')
        A('    s_and_b32 s29, s39, 0xffff')
        A(f'    s_mov_b32 s30, {WS_DIAG + 65536 + (2 << 20)}')
        A('    s_mov_b32 s31, 0x00020000')
    c = (128 ** -0.5) * 1.4426950408889634
    A(f'    s_mov_b32 s33, 0x{f2u(c):08x}           ; scale*log2(e)')
    A('    s_mov_b32 s34, 0xffff0000')
    A(f'    v_lshlrev_b32 v{vL8}, 3, v5                ; lane*8')
    A(f'    v_lshrrev_b32 v6, 4, v5')
    A(f'    v_lshl_add_u32 v{vOut}, v6, 2, v{vQo}')
    A(f'    v_lshlrev_b32 v{vLds}, 2, v5')
    A(f'    v_lshl_add_u32 v{vLds}, v4, {SCW.bit_length()-1}, v{vLds}')
    A(f'    v_mov_b32 v{vone}, 1')
    A(f'    v_mov_b32 v{vcb}, {SC}')
    A('    v_mov_b32 v6, 0')
    A('    v_mov_b32 v7, 0' if not codepf else '    s_nop 0')
    A(f'    ds_write_b32 v{vcb}, v6 offset:{CNT}')
    A(f'    ds_write_b32 v{vcb}, v6 offset:{CNT+4}')
    A(f'    ds_write_b32 v{vcb}, v6 offset:{PROG}')
    A(f'    v_mov_b32 v{vmx}, 0xff800000')
    A(f'    s_mov_b32 s{sHead}, 0')
    A(f'    s_mov_b32 s{sCnt}, {GPH // NBUF}')
    A('    s_waitcnt lgkmcnt(0)')
    A('    s_barrier')
    if sampler:
        A(f'    s_cmp_eq_u32 s3, {W}')
        A('    s_cbranch_scc1 L_sampler')
    curcap[0] = cap if procap is None else procap
    for n in range(first, 4 * NBUF):
        if n % 4 == 0 or n == first:
            A(f'    s_mov_b32 s{sKo}, {(n // 4) * STEP}')
        ld(n // 4, n % 4)
    A(f'    s_mov_b32 s{sKo}, {NBUF * STEP}')
    A(f'    s_waitcnt vmcnt({4*NBUF - first})                     ; q landed')
    WD = 4 * (NBUF - 1)
    curcap[0] = cap
    def prog():
        if sampler:
            A('    s_mov_b64 exec, 1')
            A(f'    ds_add_u32 v{vcb}, v{vone} offset:{PROG}')
            A('    s_mov_b64 exec, -1')
    A('L_kloop:')
    A(f'    s_cmp_lt_u32 s{sKo}, {REG}')
    A('    s_cbranch_scc1 L_kgo')
    A('    s_mov_b32 s12, s16')
    A('    s_mov_b32 s13, s17')
    A(f'    s_mov_b32 s{sKo}, 0')
    A('L_kgo:')
    for b in range(NBUF):
        prog()
        if not cap or cap > WD: A(f'    s_waitcnt vmcnt({WD})')
        for i in range(4):
            A(f'    v_dot2_f32_bf16 v{vt+i}, v{B(b,i)}, v{vq}, 0')
        for w in range(1, 4):
            for i in range(4):
                A(f'    v_dot2_f32_bf16 v{vt+i}, v{B(b,i)+w}, v{vq+w}, v{vt+i}')
        ld(b, 0)
        A(f'    v_add_f32_dpp v{vt}, v{vt}, v{vt} row_ror:8 row_mask:0xf bank_mask:0x3')
        A(f'    v_add_f32_dpp v{vt+2}, v{vt+2}, v{vt+2} row_ror:8 row_mask:0xf bank_mask:0x3')
        A('    s_nop 0')
        A(f'    v_add_f32_dpp v{vt}, v{vt+1}, v{vt+1} row_ror:8 row_mask:0xf bank_mask:0xc')
        A(f'    v_add_f32_dpp v{vt+2}, v{vt+3}, v{vt+3} row_ror:8 row_mask:0xf bank_mask:0xc')
        ld(b, 1)
        A(f'    v_add_f32_dpp v{vw}, v{vt}, v{vt} row_ror:12 row_mask:0xf bank_mask:0x5')
        A('    s_nop 1')
        A(f'    v_add_f32_dpp v{vw}, v{vt+2}, v{vt+2} row_ror:4 row_mask:0xf bank_mask:0xa')
        A('    s_nop 0')
        ld(b, 2)
        A(f'    v_add_f32_dpp v{vw}, v{vw}, v{vw} quad_perm:[1,0,3,2]{DPP}')
        A('    s_nop 0')
        ld(b, 3)
        A(f'    v_add_f32_dpp v{vw}, v{vw}, v{vw} quad_perm:[2,3,0,1]{DPP}')
        A(f'    s_add_u32 s{sKo}, s{sKo}, {STEP}')
        A(f'    ds_write_b32 v{vLds}, v{vw} offset:{256*b}')
        A(f'    v_max_f32 v{vmx}, v{vmx}, v{vw}')
    A(f'    v_add_u32 v{vLds}, {256*NBUF}, v{vLds}')
    A(f'    s_sub_u32 s{sCnt}, s{sCnt}, 1')
    A(f'    s_cmp_lg_u32 s{sCnt}, 0')
    A('    s_cbranch_scc1 L_kloop')
    A(f'    v_max_f32_dpp v{vmx}, v{vmx}, v{vmx} row_ror:4{DPP}')
    A(f'    s_mov_b32 s{sCnt}, {GPH // NBUF}')
    A('    s_nop 0')
    A(f'    v_max_f32_dpp v{vmx}, v{vmx}, v{vmx} row_ror:8{DPP}')
    A(f'    v_mov_b32 v{vx}, v{vmx}')
    A('    s_nop 1')
    A(f'    v_permlane32_swap_b32 v{vx}, v{vmx}')
    A('    s_nop 1')
    A(f'    v_max_f32 v{vmx}, v{vx}, v{vmx}')
    A(f'    v_mov_b32 v{vx}, v{vmx}')
    A('    s_nop 1')
    A(f'    v_permlane16_swap_b32 v{vx}, v{vmx}')
    A('    s_nop 1')
    A(f'    v_max_f32 v{vmx}, v{vx}, v{vmx}')
    A(f'    v_mul_f32 v{vM+1}, s33, v{vmx}')
    A(f'    s_cmp_lg_u32 s{sHead}, 0')
    A('    s_cbranch_scc1 L_vstart')
    A(f'    s_mov_b32 s{sHead}, 1')
    A(f'    v_mov_b32 v{vM}, v{vM+1}')
    A(f'    v_mov_b32 v{vmx}, 0xff800000')
    for e in range(4):
        A(f'    v_mov_b32 v{vq+e}, v{vq+4+e}')
    A('    s_branch L_kloop')
    A('L_vstart:')
    A(f'    v_subrev_u32 v{vLds}, {SCW}, v{vLds}')
    A(f'    s_mov_b32 s{sHead}, 0')
    A(f'    ds_read_b32 v{vsc}, v{vLds}')
    A('L_vhead:')
    A(f'    v_sub_f32 v{vneg}, 0, v{vM}')
    for e in range(8):
        A(f'    v_mov_b32 v{vacc+e}, 0')
    A(f'    v_mov_b32 v{vl}, 0')
    curcap[0] = capv
    skipcap[0] = True
    A('L_vloop:')
    A(f'    s_cmp_ge_u32 s{sKo}, {REG - tail * STEP}')
    A('    s_cselect_b64 vcc, -1, 0')
    src_lane = [0, 8, 4, 12]
    for b in range(NBUF):
        prog()
        A(f'    ds_read_b32 v{vsc + (b+1) % NBUF}, v{vLds} offset:{256*(b+1)}')
        A('    s_waitcnt lgkmcnt(1)')
        A(f'    v_fma_f32 v{vp}, v{vsc+b}, s33, v{vneg}')
        A(f'    v_exp_f32 v{vp}, v{vp}')
        for i in range(4):
            A(f'    s_waitcnt vmcnt({4*NBUF-1})')
            for w in range(4):
                A(f'    v_lshlrev_b32 v{vtmp+2*w}, 16, v{B(b,i)+w}')
                A(f'    v_and_b32 v{vtmp+2*w+1}, s34, v{B(b,i)+w}')
            ld(b, i)
            for e in range(8):
                A(f'    v_fmac_f32_dpp v{vacc+e}, v{vp}, v{vtmp+e} row_newbcast:{src_lane[i]}{DPP}')
        A(f'    v_add_f32 v{vl}, v{vl}, v{vp}')
        A(f'    s_add_u32 s{sKo}, s{sKo}, {STEP}')
    A(f'    v_add_u32 v{vLds}, {256*NBUF}, v{vLds}')
    A(f'    s_sub_u32 s{sCnt}, s{sCnt}, 1')
    A(f'    s_cmp_lg_u32 s{sCnt}, 0')
    A('    s_cbranch_scc1 L_vloop')
    A(f'    s_mul_i32 s63, s{sHead}, {SL}')
    A(f'    s_add_u32 s63, s63, {SC}')
    A(f'    v_add_f32_dpp v{vl}, v{vl}, v{vl} row_ror:4{DPP}')
    for k in range(4):
        A(f'    v_permlane32_swap_b32 v{vacc+k}, v{vacc+k+4}')
    A(f'    v_add_f32_dpp v{vl}, v{vl}, v{vl} row_ror:8{DPP}')
    A('    s_lshl_b32 s64, s3, 9')
    A('    s_add_u32 s64, s64, s63')
    for k in range(4):
        A(f'    v_add_f32 v{vacc+k}, v{vacc+k}, v{vacc+k+4}')
    A(f'    v_mov_b32 v{vx}, v{vl}')
    A(f'    v_add_u32 v4, s64, v{vL8}')
    A('    s_lshl_b32 s64, s3, 3')
    A(f'    v_permlane16_swap_b32 v{vacc}, v{vacc+2}')
    A(f'    v_permlane16_swap_b32 v{vacc+1}, v{vacc+3}')
    A(f'    v_permlane32_swap_b32 v{vl}, v{vx}')
    A('    s_add_u32 s64, s64, s63')
    A('    v_mov_b32 v5, s64')
    A(f'    v_add_f32 v{vacc}, v{vacc}, v{vacc+2}')
    A(f'    v_add_f32 v{vacc+1}, v{vacc+1}, v{vacc+3}')
    A(f'    v_add_f32 v{vl}, v{vl}, v{vx}')
    A(f'    ds_write_b64 v4, v[{vacc}:{vacc+1}]')
    A(f'    v_mov_b32 v{vx}, v{vl}')
    A(f'    v_mov_b32 v{vmn}, v{vM}')
    A(f'    s_lshl_b32 s65, s{sHead}, 2')
    A(f'    v_permlane16_swap_b32 v{vl}, v{vx}')
    A(f'    v_add_u32 v6, s65, v{vcb}')
    A('    s_nop 0')
    A(f'    v_add_f32 v{vmn+1}, v{vl}, v{vx}')
    A(f'    ds_write_b64 v5, v[{vmn}:{vmn+1}] offset:{MLO}')
    A('    s_mov_b64 exec, 1')
    A(f'    ds_add_rtn_u32 v7, v6, v{vone} offset:{CNT}')
    A('    s_mov_b64 exec, -1')
    A('    s_waitcnt lgkmcnt(0)')
    A('    v_readfirstlane_b32 s66, v7')
    A(f'    v_add_u32 v4, s63, v{vL8}')
    A('    v_mov_b32 v5, s63')
    A(f'    s_cmp_lg_u32 s66, {W-1}')
    A('    s_cbranch_scc1 L_unit_ret')
    for e2 in range(W // 2):
        A(f'    ds_read_b128 v[{vml+4*e2}:{vml+4*e2+3}], v5 offset:{MLO+16*e2}')
    for e in range(W):
        A(f'    ds_read_b64 v[{vdat+2*e}:{vdat+2*e+1}], v4 offset:{512*e}')
    A(f'    s_waitcnt lgkmcnt({W})')
    A(f'    v_max_f32 v{vmn}, v{vml}, v{vml+2}')
    for e in range(2, W, 2):
        A(f'    v_max3_f32 v{vmn}, v{vmn}, v{vml+2*e}, v{vml+2*e+2}')
    for e in range(W):
        A(f'    v_sub_f32 v{vml+2*e}, v{vml+2*e}, v{vmn}')
    for e in range(W):
        A(f'    v_exp_f32 v{vml+2*e}, v{vml+2*e}')
    A(f'    s_lshl_b32 s64, s{sHead}, 8')
    A(f'    v_mul_f32 v{vl}, v{vml}, v{vml+1}')
    for e in range(1, W):
        A(f'    v_fmac_f32 v{vl}, v{vml+2*e}, v{vml+2*e+1}')
    A(f'    v_rcp_f32 v{vx}, v{vl}')
    A('    s_waitcnt lgkmcnt(0)')
    A(f'    v_mul_f32 v{vt}, v{vml}, v{vdat}')
    A(f'    v_mul_f32 v{vt+1}, v{vml}, v{vdat+1}')
    for e in range(1, W):
        A(f'    v_fmac_f32 v{vt}, v{vml+2*e}, v{vdat+2*e}')
        A(f'    v_fmac_f32 v{vt+1}, v{vml+2*e}, v{vdat+2*e+1}')
    A(f'    v_mul_f32 v{vt}, v{vt}, v{vx}')
    A(f'    v_mul_f32 v{vt+1}, v{vt+1}, v{vx}')
    A(f'    v_cvt_pk_bf16_f32 v7, v{vt}, v{vt+1}')
    A(f'    buffer_store_dword v7, v{vOut}, s[24:27], s64 offen' + (' ' + opol if opol else ''))
    if diag:
        A('    s_memrealtime s[68:69]')
        A('    s_getreg_b32 s62, hwreg(HW_REG_XCC_ID)')
        A('    s_waitcnt lgkmcnt(0)')
        A('    s_or_b32 s62, s62, 0x100')
        A(f'    v_mov_b32 v{vml}, s70')
        A(f'    v_mov_b32 v{vml+1}, s62')
        A(f'    v_mov_b32 v{vml+2}, s68')
        A(f'    v_mov_b32 v{vml+3}, s68')
        A('    v_mov_b32 v6, 0')
        A('    s_lshl_b32 s64, s2, 5')
        A(f'    s_lshl_b32 s65, s{sHead}, 4')
        A('    s_add_u32 s64, s64, s65')
        A(f'    s_add_u32 s64, s64, {WS_DIAG}')
        A('    s_mov_b64 exec, 1')
        A(f'    buffer_store_dwordx4 v[{vml}:{vml+3}], v6, s[28:31], s64 offen')
        A('    s_mov_b64 exec, -1')
    A('L_unit_ret:')
    A(f'    s_cmp_lg_u32 s{sHead}, 0')
    A('    s_cbranch_scc1 L_end')
    A(f'    s_mov_b32 s{sHead}, 1')
    A(f'    s_mov_b32 s{sCnt}, {GPH // NBUF}')
    A(f'    v_mov_b32 v{vM}, v{vM+1}')
    A('    s_branch L_vhead')
    if sampler:
        A('L_sampler:')
        A('    s_lshl_b32 s82, s2, 12')
        A(f'    s_add_u32 s82, s82, {WS_DIAG + 65536}')
        A('    s_add_u32 s83, s82, 4096')
        A('    v_mov_b32 v6, 0')
        A('L_s_loop:')
        A(f'    ds_read_b32 v5, v{vcb} offset:{PROG}')
        A('    s_memrealtime s[84:85]')
        A('    s_waitcnt lgkmcnt(0)')
        A('    s_cmp_ge_u32 s82, s83')
        A('    s_cbranch_scc1 L_end')
        A('    v_mov_b32 v14, s84')
        A('    v_mov_b32 v15, v5')
        A('    s_mov_b64 exec, 1')
        A('    buffer_store_dwordx2 v[14:15], v6, s[28:31], s82 offen')
        A('    s_mov_b64 exec, -1')
        A('    s_add_u32 s82, s82, 8')
        A('    v_readfirstlane_b32 s62, v5')
        A('    s_cmp_ge_u32 s62, 512')
        A('    s_cbranch_scc1 L_end')
        A('    s_sleep 8')
        A('    s_branch L_s_loop')
    A('L_end:')
    A('    s_endpgm')
    A('L_code_end:')
    A('    s_endpgm')
    A('.section .rodata,"a"')
    A('.p2align 6')
    A(f'.amdhsa_kernel {NAME}')
    A(f'  .amdhsa_next_free_vgpr {nv}')
    A('  .amdhsa_next_free_sgpr 88')
    A(f'  .amdhsa_accum_offset {(nv + 3) // 4 * 4}')
    A('  .amdhsa_group_segment_fixed_size 0')
    A('  .amdhsa_kernarg_size 48')
    A('  .amdhsa_user_sgpr_count 2')
    A('  .amdhsa_user_sgpr_kernarg_segment_ptr 1')
    A('  .amdhsa_system_sgpr_workgroup_id_x 1')
    A('  .amdhsa_float_denorm_mode_32 3')
    A('.end_amdhsa_kernel')
    return '\n'.join(L) + '\n'

if __name__ == '__main__':
    ap = argparse.ArgumentParser()
    ap.add_argument('out')
    ap.add_argument('--W', type=int, default=4)
    ap.add_argument('--NBUF', type=int, default=4)
    ap.add_argument('--cap', type=int, default=6)
    ap.add_argument('--capv', type=int, default=None)
    ap.add_argument('--first', type=int, default=6)
    ap.add_argument('--policy', default='nt')
    ap.add_argument('--diag', action='store_true')
    ap.add_argument('--sampler', action='store_true')
    ap.add_argument('--codepf', action='store_true')
    ap.add_argument('--tail', type=int, default=0)
    ap.add_argument('--spread', action='store_true')
    ap.add_argument('--touch', action='store_true')
    ap.add_argument('--compact', action='store_true')
    ap.add_argument('--opol', default='')
    ap.add_argument('--procap', type=int, default=None)
    a = ap.parse_args()
    open(a.out, 'w').write(gen(a.W, a.NBUF, a.cap, a.capv, a.first, a.policy, a.diag or a.sampler, a.sampler, a.codepf, a.tail, a.spread, a.procap, a.touch, a.opol, a.compact))
```

```python
import sys, argparse, struct

def f2u(x):
    return struct.unpack('<I', struct.pack('<f', x))[0]

HEADER = open('standalone__mha_softmax__sampling.s.ref').read().split('; Override launch')[0]
NAME = 'standalone__mha_softmax__sampling_kernel'

def gen(W=4, NBUF=4, cap=6, capv=None, first=6, policy='nt', diag=False, sampler=False, codepf=False, tail=0, spread=False, procap=None, touch=False, opol='', compact=False, xorwg=0, tailo=None, hicap=0, wdiag=False, frac=0, fracv=None, perm=None, rotw=False, rotbits=None, remap=0, hx=0):
    L = []
    A = L.append
    G = 256
    GPH = 128 // W
    STEP = W * 4096
    assert GPH % NBUF == 0
    if capv is None: capv = cap
    SCW = 2 * GPH * 256
    SC = W * SCW
    SL = W * 512 + 128
    MLO = W * 512
    CB = 2 * SL
    CNT, PROG = CB, CB + 16
    lds = max(81920 + 1024, SC + CB + 64)
    WS_DIAG = 8 << 20
    REG = 1 << 20
    pol = (' ' + policy) if policy else ''
    DPP = ' row_mask:0xf bank_mask:0xf'
    vOff, vQo, vL8 = 1, 2, 3
    vacc, vmx, vl, vt, vw, vx, vmn, vp, vone = 8, 16, 17, 18, 22, 23, 24, 26, 27
    vtmp = 28
    vcb, vOut, vLds, vneg = 36, 37, 38, 39
    vq = 40
    vM = 48
    vsc = 52
    vO4 = 56
    vml = 60
    vdat = vml + 2 * W
    vbuf = (vdat + 2 * W + 3) // 4 * 4
    def B(b, i): return vbuf + b * 16 + i * 4
    nv = vbuf + NBUF * 16
    NW = W + (1 if sampler else 0)
    sKo, sCnt, sHead = 44, 45, 46
    if perm is None: perm = [12, 13, 14, 15, 16, 17, 18]
    if len(perm) == 7: perm = [10, 11] + perm
    lbits, perm = perm[:2], perm[2:]
    assert sorted(lbits + perm) == list(range(10, 19)) and W == 4 and NBUF == 4
    ident = perm == [12, 13, 14, 15, 16, 17, 18] and not rotw
    limm = lbits == [10, 11]
    def LO(i): return ((i & 1) << lbits[0]) | ((i >> 1) << lbits[1])
    def U(u): return ((u & 1) << perm[2]) | ((u >> 1) << perm[3])
    sPh, sBs, sRot = 52, 53, 54
    def itbase():
        if ident: return
        A(f'    s_and_b32 s{sBs}, s{sKo}, 0x180000')
        for k in range(3):
            A(f'    s_bfe_u32 s62, s{sKo}, {(1 << 16) | (16 + k):#x}')
            A(f'    s_lshl_b32 s62, s62, {perm[4+k]}')
            A(f'    s_or_b32 s{sBs}, s{sBs}, s62')
        if rotw: A(f'    s_xor_b32 s{sBs}, s{sBs}, s{sRot}')
        if hx:
            A(f'    s_bfe_u32 s62, s{sKo}, 0x10013')
            A(f'    s_lshl_b32 s62, s62, {hx}')
            A(f'    s_xor_b32 s{sBs}, s{sBs}, s62')
    def phys(b):
        if ident: return
        A(f'    s_add_u32 s{sPh}, s{sBs}, {U(b)}')
    def rotinit():
        A(f'    s_mov_b32 s{sRot}, 0')
        if not rotw: return
        j = 0
        rb = rotbits or [3, 4, 5]
        for k in range(3):
            if perm[4+k] <= 14:
                A(f'    s_bfe_u32 s62, s2, {(1 << 16) | rb[j]:#x}')
                A(f'    s_lshl_b32 s62, s62, {perm[4+k]}')
                A(f'    s_or_b32 s{sRot}, s{sRot}, s62')
                j += 1
    A(HEADER.rstrip('\n'))
    A(f'; @launch grid=({G},1,1) block=({NW*64},1,1) lds={lds}')
    A('.amdgcn_target "amdgcn-amd-amdhsa--gfx950"')
    A('.text')
    A(f'.globl {NAME}')
    A('.p2align 8')
    A(f'.type {NAME},@function')
    A(f'{NAME}:')
    if diag:
        A('    s_memrealtime s[70:71]')
    if compact:
        assert not sampler and not spread
        A('    s_load_dwordx4 s[4:7], s[0:1], 0        ; q, k')
        A('    v_and_b32 v5, 63, v0                    ; lane')
        A('    v_lshrrev_b32 v4, 6, v0')
        A(f'    v_lshlrev_b32 v{vOff}, 4, v5')
        if ident or perm[1] == perm[0] + 1:
            A(f'    v_lshl_add_u32 v{vOff}, v4, {perm[0]}, v{vOff}')
        else:
            A('    v_and_b32 v6, 1, v4')
            A(f'    v_lshl_add_u32 v{vOff}, v6, {perm[0]}, v{vOff}')
            A('    v_lshrrev_b32 v6, 1, v4')
            A(f'    v_lshl_add_u32 v{vOff}, v6, {perm[1]}, v{vOff}')
        if not limm:
            A(f'    v_mov_b32 v{vO4}, v{vOff}')
            for i in range(1, 4):
                A(f'    v_add_u32 v{vO4+i}, {LO(i)}, v{vOff}')
        if remap == 1:
            A('    s_bfe_u32 s62, s2, 0x10003')
            A('    s_and_b32 s63, s2, 7')
            A('    s_lshl_b32 s63, s63, 1')
            A('    s_andn2_b32 s2, s2, 15')
            A('    s_or_b32 s2, s2, s62')
            A('    s_or_b32 s2, s2, s63')
        if remap == 2:
            A('    s_bfe_u32 s62, s2, 0x50003')
            A('    s_and_b32 s63, s2, 7')
            A('    s_lshl_b32 s63, s63, 5')
            A('    s_andn2_b32 s2, s2, 255')
            A('    s_or_b32 s2, s2, s62')
            A('    s_or_b32 s2, s2, s63')
        rotinit()
        if xorwg: A(f'    s_xor_b32 s2, s2, {xorwg}')
        A('    s_lshl_b32 s50, s2, 20')
        A('    s_lshr_b32 s3, s2, 8')
        A('    s_cbranch_scc1 L_end')
        A('    s_lshl_b32 s14, 1, 20')
        A('    s_mov_b32 s15, 0x00020000')
        A('    s_waitcnt lgkmcnt(0)')
        A('    s_add_u32 s12, s6, s50')
        A('    s_addc_u32 s13, s7, 0')
        A('    s_and_b32 s13, s13, 0xffff')
    else:
        A('    s_load_dwordx4 s[4:7], s[0:1], 0        ; q, k')
        A('    s_load_dwordx4 s[8:11], s[0:1], 16      ; v, out')
        if diag:
            A('    s_load_dwordx2 s[38:39], s[0:1], 40     ; ws')
        A(f'    s_cmp_ge_u32 s2, {G}')
        A('    s_cbranch_scc1 L_end')
        A('    v_lshrrev_b32 v4, 6, v0')
        A('    v_and_b32 v5, 63, v0                    ; lane')
        A('    v_readfirstlane_b32 s3, v4')
        A(f'    v_lshlrev_b32 v{vOff}, 4, v5')
        if spread:
            A(f'    v_lshlrev_b32 v{vO4}, 4, v0')
            for i in range(1, 4):
                A(f'    v_add_u32 v{vO4+i}, {i * W * 1024}, v{vO4}')
        else:
            A(f'    v_lshl_add_u32 v{vOff}, v4, 12, v{vOff}')
        A(f'    v_and_b32 v{vQo}, 15, v0')
        A(f'    v_lshlrev_b32 v{vQo}, 4, v{vQo}                ; (lane%16)*16')
        A('    s_lshl_b32 s50, s2, 20')
        A('    s_lshl_b32 s51, s2, 9')
        A(f'    s_mov_b32 s14, {REG}')
        A('    s_mov_b32 s15, 0x00020000')
        A('    s_mov_b32 s22, 512')
        A('    s_mov_b32 s23, 0x00020000')
        A(f'    s_mov_b32 s{sKo}, 0')
        A(f'    s_mov_b32 s47, {STEP}')
        A('    s_waitcnt lgkmcnt(0)')
        A('    s_add_u32 s12, s6, s50')
        A('    s_addc_u32 s13, s7, 0')
        A('    s_and_b32 s13, s13, 0xffff')
    if sampler:
        A(f'    s_cmp_eq_u32 s3, {W}')
        A('    s_cbranch_scc1 L_skip_first')
    curcap = [0]
    skipcap = [False]
    ncw = [0]
    fr = [0, 0]
    def capwait():
        if not curcap[0]: return
        save = curcap[0]
        fr[1] += abs(fr[0])
        if fr[1] >= 16:
            fr[1] -= 16
            curcap[0] += 1 if fr[0] > 0 else -1
        capwait2()
        curcap[0] = save
    def capwait2():
        if skipcap[0]:
            k = ncw[0]; ncw[0] += 1
            A(f'    s_cbranch_vccnz L_cw{k}')
            A(f'    s_waitcnt vmcnt({curcap[0]-1})')
            A(f'L_cw{k}:')
            if hicap: A(f'    s_waitcnt vmcnt({hicap-1})')
        else:
            A(f'    s_waitcnt vmcnt({curcap[0]-1})')
    lso = [sKo]
    def ld(b, i, so=None):
        if so is None: so = lso[0]
        capwait()
        if spread or not limm:
            A(f'    buffer_load_dwordx4 v[{B(b,i)}:{B(b,i)+3}], v{vO4+i}, s[12:15], s{so} offen{pol}')
        else:
            A(f'    buffer_load_dwordx4 v[{B(b,i)}:{B(b,i)+3}], v{vOff}, s[12:15], s{so} offen offset:{i*1024}{pol}')
    assert 4 <= first <= 8
    for n in range(first):
        if compact and n < 4:
            ld(0, n, sRot)
            continue
        if compact and n == 4:
            A(f'    s_add_u32 s47, s{sRot}, {U(1)}')
        ld(n // 4, n % 4, sKo if n < 4 else 47)
    if compact:
        A('    s_load_dwordx4 s[8:11], s[0:1], 16      ; v, out')
        if diag:
            A('    s_load_dwordx2 s[38:39], s[0:1], 40     ; ws')
        A('    v_readfirstlane_b32 s3, v4')
        A(f'    v_and_b32 v{vQo}, 15, v0')
        A(f'    v_lshlrev_b32 v{vQo}, 4, v{vQo}                ; (lane%16)*16')
        A('    s_lshl_b32 s51, s2, 9')
        A('    s_mov_b32 s22, 512')
        A('    s_mov_b32 s23, 0x00020000')
    if sampler: A('L_skip_first:')
    A('    s_add_u32 s20, s4, s51')
    A('    s_addc_u32 s21, s5, 0')
    A('    s_and_b32 s21, s21, 0xffff')
    for h in range(2):
        A(f'    buffer_load_dwordx4 v[{vq+4*h}:{vq+4*h+3}], v{vQo}, s[20:23], 0 offen offset:{256*h}')
    if codepf:
        A('    s_getpc_b64 s[62:63]')
        A('L_pfbase:')
        A('    v_lshlrev_b32 v6, 6, v0')
        A('    v_cmp_gt_u32 vcc, L_code_end-L_pfbase, v6')
        A('    s_and_saveexec_b64 s[64:65], vcc')
        A('    s_cbranch_execz L_nopf')
        A('    global_load_dword v7, v6, s[62:63]')
        A('L_nopf:')
        A('    s_mov_b64 exec, s[64:65]')
    if compact: A('    s_waitcnt lgkmcnt(0)')
    A('    s_add_u32 s16, s8, s50')
    A('    s_addc_u32 s17, s9, 0')
    A('    s_and_b32 s17, s17, 0xffff')
    if touch:
        A('    s_load_dword s62, s[16:17], 0')
    A('    s_add_u32 s24, s10, s51')
    A('    s_addc_u32 s25, s11, 0')
    A('    s_and_b32 s25, s25, 0xffff')
    A('    s_mov_b32 s26, 512')
    A('    s_mov_b32 s27, 0x00020000')
    if diag:
        A('    s_mov_b32 s28, s38')
        A('    s_and_b32 s29, s39, 0xffff')
        A(f'    s_mov_b32 s30, {WS_DIAG + 65536 + (2 << 20)}')
        A('    s_mov_b32 s31, 0x00020000')
    c = (128 ** -0.5) * 1.4426950408889634
    A(f'    s_mov_b32 s33, 0x{f2u(c):08x}           ; scale*log2(e)')
    A('    s_mov_b32 s34, 0xffff0000')
    if tailo is not None: A(f'    s_mov_b32 s49, {REG - tail * STEP}')
    A(f'    v_lshlrev_b32 v{vL8}, 3, v5                ; lane*8')
    A(f'    v_lshrrev_b32 v6, 4, v5')
    A(f'    v_lshl_add_u32 v{vOut}, v6, 2, v{vQo}')
    A(f'    v_lshlrev_b32 v{vLds}, 2, v5')
    A(f'    v_lshl_add_u32 v{vLds}, v4, {SCW.bit_length()-1}, v{vLds}')
    A(f'    v_mov_b32 v{vone}, 1')
    A(f'    v_mov_b32 v{vcb}, {SC}')
    A('    v_mov_b32 v6, 0')
    A('    v_mov_b32 v7, 0' if not codepf else '    s_nop 0')
    A(f'    ds_write_b32 v{vcb}, v6 offset:{CNT}')
    A(f'    ds_write_b32 v{vcb}, v6 offset:{CNT+4}')
    A(f'    ds_write_b32 v{vcb}, v6 offset:{PROG}')
    A(f'    v_mov_b32 v{vmx}, 0xff800000')
    A(f'    s_mov_b32 s{sHead}, 0')
    A(f'    s_mov_b32 s{sCnt}, {GPH // NBUF}')
    A('    s_waitcnt lgkmcnt(0)')
    A('    s_barrier')
    if sampler:
        A(f'    s_cmp_eq_u32 s3, {W}')
        A('    s_cbranch_scc1 L_sampler')
    curcap[0] = cap if procap is None else procap
    for n in range(first, 4 * NBUF):
        if n % 4 == 0 or n == first:
            A(f'    s_add_u32 s{sKo}, s{sRot}, {U(n // 4)}')
        ld(n // 4, n % 4)
    A(f'    s_mov_b32 s{sKo}, {NBUF * STEP}')
    A(f'    s_waitcnt vmcnt({4*NBUF - first})                     ; q landed')
    WD = 4 * (NBUF - 1)
    curcap[0] = cap
    def prog():
        if sampler:
            A('    s_mov_b64 exec, 1')
            A(f'    ds_add_u32 v{vcb}, v{vone} offset:{PROG}')
            A('    s_mov_b64 exec, -1')
    A('L_kloop:')
    fr[0] = frac; fr[1] = 0
    A(f'    s_cmp_lt_u32 s{sKo}, {REG}')
    A('    s_cbranch_scc1 L_kgo')
    A('    s_mov_b32 s12, s16')
    A('    s_mov_b32 s13, s17')
    A(f'    s_mov_b32 s{sKo}, 0')
    A('L_kgo:')
    itbase()
    lso[0] = sKo if ident else sPh
    for b in range(NBUF):
        prog()
        phys(b)
        if not cap or cap > WD: A(f'    s_waitcnt vmcnt({WD})')
        for i in range(4):
            A(f'    v_dot2_f32_bf16 v{vt+i}, v{B(b,i)}, v{vq}, 0')
        for w in range(1, 4):
            for i in range(4):
                A(f'    v_dot2_f32_bf16 v{vt+i}, v{B(b,i)+w}, v{vq+w}, v{vt+i}')
        ld(b, 0)
        A(f'    v_add_f32_dpp v{vt}, v{vt}, v{vt} row_ror:8 row_mask:0xf bank_mask:0x3')
        A(f'    v_add_f32_dpp v{vt+2}, v{vt+2}, v{vt+2} row_ror:8 row_mask:0xf bank_mask:0x3')
        A('    s_nop 0')
        A(f'    v_add_f32_dpp v{vt}, v{vt+1}, v{vt+1} row_ror:8 row_mask:0xf bank_mask:0xc')
        A(f'    v_add_f32_dpp v{vt+2}, v{vt+3}, v{vt+3} row_ror:8 row_mask:0xf bank_mask:0xc')
        ld(b, 1)
        A(f'    v_add_f32_dpp v{vw}, v{vt}, v{vt} row_ror:12 row_mask:0xf bank_mask:0x5')
        A('    s_nop 1')
        A(f'    v_add_f32_dpp v{vw}, v{vt+2}, v{vt+2} row_ror:4 row_mask:0xf bank_mask:0xa')
        A('    s_nop 0')
        ld(b, 2)
        A(f'    v_add_f32_dpp v{vw}, v{vw}, v{vw} quad_perm:[1,0,3,2]{DPP}')
        A('    s_nop 0')
        ld(b, 3)
        A(f'    v_add_f32_dpp v{vw}, v{vw}, v{vw} quad_perm:[2,3,0,1]{DPP}')
        A(f'    s_add_u32 s{sKo}, s{sKo}, {STEP}')
        A(f'    ds_write_b32 v{vLds}, v{vw} offset:{256*b}')
        A(f'    v_max_f32 v{vmx}, v{vmx}, v{vw}')
    A(f'    v_add_u32 v{vLds}, {256*NBUF}, v{vLds}')
    A(f'    s_sub_u32 s{sCnt}, s{sCnt}, 1')
    A(f'    s_cmp_lg_u32 s{sCnt}, 0')
    A('    s_cbranch_scc1 L_kloop')
    A(f'    v_max_f32_dpp v{vmx}, v{vmx}, v{vmx} row_ror:4{DPP}')
    A(f'    s_mov_b32 s{sCnt}, {GPH // NBUF}')
    A('    s_nop 0')
    A(f'    v_max_f32_dpp v{vmx}, v{vmx}, v{vmx} row_ror:8{DPP}')
    A(f'    v_mov_b32 v{vx}, v{vmx}')
    A('    s_nop 1')
    A(f'    v_permlane32_swap_b32 v{vx}, v{vmx}')
    A('    s_nop 1')
    A(f'    v_max_f32 v{vmx}, v{vx}, v{vmx}')
    A(f'    v_mov_b32 v{vx}, v{vmx}')
    A('    s_nop 1')
    A(f'    v_permlane16_swap_b32 v{vx}, v{vmx}')
    A('    s_nop 1')
    A(f'    v_max_f32 v{vmx}, v{vx}, v{vmx}')
    A(f'    v_mul_f32 v{vM+1}, s33, v{vmx}')
    A(f'    s_cmp_lg_u32 s{sHead}, 0')
    A('    s_cbranch_scc1 L_vstart')
    A(f'    s_mov_b32 s{sHead}, 1')
    A(f'    v_mov_b32 v{vM}, v{vM+1}')
    A(f'    v_mov_b32 v{vmx}, 0xff800000')
    for e in range(4):
        A(f'    v_mov_b32 v{vq+e}, v{vq+4+e}')
    A('    s_branch L_kloop')
    A('L_vstart:')
    if tailo is not None:
        A('    s_getreg_b32 s48, hwreg(HW_REG_XCC_ID)')
        A('    s_bitcmp1_b32 s48, 0')
        A(f'    s_cselect_b32 s48, {REG - tailo * STEP}, s49')
    A(f'    v_subrev_u32 v{vLds}, {SCW}, v{vLds}')
    A(f'    s_mov_b32 s{sHead}, 0')
    A(f'    ds_read_b32 v{vsc}, v{vLds}')
    A('L_vhead:')
    A(f'    v_sub_f32 v{vneg}, 0, v{vM}')
    for e in range(8):
        A(f'    v_mov_b32 v{vacc+e}, 0')
    A(f'    v_mov_b32 v{vl}, 0')
    curcap[0] = capv
    skipcap[0] = True
    A('L_vloop:')
    fr[0] = frac if fracv is None else fracv; fr[1] = 0
    if tailo is None:
        A(f'    s_cmp_ge_u32 s{sKo}, {REG - tail * STEP}')
    else:
        A(f'    s_cmp_ge_u32 s{sKo}, s48')
    A('    s_cselect_b64 vcc, -1, 0')
    src_lane = [0, 8, 4, 12]
    itbase()
    for b in range(NBUF):
        prog()
        phys(b)
        A(f'    ds_read_b32 v{vsc + (b+1) % NBUF}, v{vLds} offset:{256*(b+1)}')
        A('    s_waitcnt lgkmcnt(1)')
        A(f'    v_fma_f32 v{vp}, v{vsc+b}, s33, v{vneg}')
        A(f'    v_exp_f32 v{vp}, v{vp}')
        for i in range(4):
            A(f'    s_waitcnt vmcnt({4*NBUF-1})')
            for w in range(4):
                A(f'    v_lshlrev_b32 v{vtmp+2*w}, 16, v{B(b,i)+w}')
                A(f'    v_and_b32 v{vtmp+2*w+1}, s34, v{B(b,i)+w}')
            ld(b, i)
            for e in range(8):
                A(f'    v_fmac_f32_dpp v{vacc+e}, v{vp}, v{vtmp+e} row_newbcast:{src_lane[i]}{DPP}')
        A(f'    v_add_f32 v{vl}, v{vl}, v{vp}')
        A(f'    s_add_u32 s{sKo}, s{sKo}, {STEP}')
    A(f'    v_add_u32 v{vLds}, {256*NBUF}, v{vLds}')
    A(f'    s_sub_u32 s{sCnt}, s{sCnt}, 1')
    A(f'    s_cmp_lg_u32 s{sCnt}, 0')
    A('    s_cbranch_scc1 L_vloop')
    if wdiag:
        A('    s_memrealtime s[68:69]')
        A('    s_waitcnt lgkmcnt(0)')
        A('    v_mov_b32 v6, 0')
        A('    v_mov_b32 v7, s68')
        A('    s_lshl_b32 s64, s2, 5')
        A(f'    s_lshl_b32 s65, s{sHead}, 4')
        A('    s_add_u32 s64, s64, s65')
        A('    s_lshl_b32 s65, s3, 2')
        A('    s_add_u32 s64, s64, s65')
        A(f'    s_add_u32 s64, s64, {WS_DIAG + 8192}')
        A('    s_mov_b64 exec, 1')
        A('    buffer_store_dword v7, v6, s[28:31], s64 offen')
        A('    s_mov_b64 exec, -1')
    A(f'    s_mul_i32 s63, s{sHead}, {SL}')
    A(f'    s_add_u32 s63, s63, {SC}')
    A(f'    v_add_f32_dpp v{vl}, v{vl}, v{vl} row_ror:4{DPP}')
    for k in range(4):
        A(f'    v_permlane32_swap_b32 v{vacc+k}, v{vacc+k+4}')
    A(f'    v_add_f32_dpp v{vl}, v{vl}, v{vl} row_ror:8{DPP}')
    A('    s_lshl_b32 s64, s3, 9')
    A('    s_add_u32 s64, s64, s63')
    for k in range(4):
        A(f'    v_add_f32 v{vacc+k}, v{vacc+k}, v{vacc+k+4}')
    A(f'    v_mov_b32 v{vx}, v{vl}')
    A(f'    v_add_u32 v4, s64, v{vL8}')
    A('    s_lshl_b32 s64, s3, 3')
    A(f'    v_permlane16_swap_b32 v{vacc}, v{vacc+2}')
    A(f'    v_permlane16_swap_b32 v{vacc+1}, v{vacc+3}')
    A(f'    v_permlane32_swap_b32 v{vl}, v{vx}')
    A('    s_add_u32 s64, s64, s63')
    A('    v_mov_b32 v5, s64')
    A(f'    v_add_f32 v{vacc}, v{vacc}, v{vacc+2}')
    A(f'    v_add_f32 v{vacc+1}, v{vacc+1}, v{vacc+3}')
    A(f'    v_add_f32 v{vl}, v{vl}, v{vx}')
    A(f'    ds_write_b64 v4, v[{vacc}:{vacc+1}]')
    A(f'    v_mov_b32 v{vx}, v{vl}')
    A(f'    v_mov_b32 v{vmn}, v{vM}')
    A(f'    s_lshl_b32 s65, s{sHead}, 2')
    A(f'    v_permlane16_swap_b32 v{vl}, v{vx}')
    A(f'    v_add_u32 v6, s65, v{vcb}')
    A('    s_nop 0')
    A(f'    v_add_f32 v{vmn+1}, v{vl}, v{vx}')
    A(f'    ds_write_b64 v5, v[{vmn}:{vmn+1}] offset:{MLO}')
    A('    s_mov_b64 exec, 1')
    A(f'    ds_add_rtn_u32 v7, v6, v{vone} offset:{CNT}')
    A('    s_mov_b64 exec, -1')
    A('    s_waitcnt lgkmcnt(0)')
    A('    v_readfirstlane_b32 s66, v7')
    A(f'    v_add_u32 v4, s63, v{vL8}')
    A('    v_mov_b32 v5, s63')
    A(f'    s_cmp_lg_u32 s66, {W-1}')
    A('    s_cbranch_scc1 L_unit_ret')
    for e2 in range(W // 2):
        A(f'    ds_read_b128 v[{vml+4*e2}:{vml+4*e2+3}], v5 offset:{MLO+16*e2}')
    for e in range(W):
        A(f'    ds_read_b64 v[{vdat+2*e}:{vdat+2*e+1}], v4 offset:{512*e}')
    A(f'    s_waitcnt lgkmcnt({W})')
    A(f'    v_max_f32 v{vmn}, v{vml}, v{vml+2}')
    for e in range(2, W, 2):
        A(f'    v_max3_f32 v{vmn}, v{vmn}, v{vml+2*e}, v{vml+2*e+2}')
    for e in range(W):
        A(f'    v_sub_f32 v{vml+2*e}, v{vml+2*e}, v{vmn}')
    for e in range(W):
        A(f'    v_exp_f32 v{vml+2*e}, v{vml+2*e}')
    A(f'    s_lshl_b32 s64, s{sHead}, 8')
    A(f'    v_mul_f32 v{vl}, v{vml}, v{vml+1}')
    for e in range(1, W):
        A(f'    v_fmac_f32 v{vl}, v{vml+2*e}, v{vml+2*e+1}')
    A(f'    v_rcp_f32 v{vx}, v{vl}')
    A('    s_waitcnt lgkmcnt(0)')
    A(f'    v_mul_f32 v{vt}, v{vml}, v{vdat}')
    A(f'    v_mul_f32 v{vt+1}, v{vml}, v{vdat+1}')
    for e in range(1, W):
        A(f'    v_fmac_f32 v{vt}, v{vml+2*e}, v{vdat+2*e}')
        A(f'    v_fmac_f32 v{vt+1}, v{vml+2*e}, v{vdat+2*e+1}')
    A(f'    v_mul_f32 v{vt}, v{vt}, v{vx}')
    A(f'    v_mul_f32 v{vt+1}, v{vt+1}, v{vx}')
    A(f'    v_cvt_pk_bf16_f32 v7, v{vt}, v{vt+1}')
    A(f'    buffer_store_dword v7, v{vOut}, s[24:27], s64 offen' + (' ' + opol if opol else ''))
    if diag:
        A('    s_memrealtime s[68:69]')
        A('    s_getreg_b32 s62, hwreg(HW_REG_XCC_ID)')
        A('    s_waitcnt lgkmcnt(0)')
        A('    s_or_b32 s62, s62, 0x100')
        A(f'    v_mov_b32 v{vml}, s70')
        A(f'    v_mov_b32 v{vml+1}, s62')
        A(f'    v_mov_b32 v{vml+2}, s68')
        A('    s_getreg_b32 s62, hwreg(HW_REG_HW_ID)')
        A(f'    v_mov_b32 v{vml+3}, s62')
        A('    v_mov_b32 v6, 0')
        A('    s_lshl_b32 s64, s2, 5')
        A(f'    s_lshl_b32 s65, s{sHead}, 4')
        A('    s_add_u32 s64, s64, s65')
        A(f'    s_add_u32 s64, s64, {WS_DIAG}')
        A('    s_mov_b64 exec, 1')
        A(f'    buffer_store_dwordx4 v[{vml}:{vml+3}], v6, s[28:31], s64 offen')
        A('    s_mov_b64 exec, -1')
    A('L_unit_ret:')
    A(f'    s_cmp_lg_u32 s{sHead}, 0')
    A('    s_cbranch_scc1 L_end')
    A(f'    s_mov_b32 s{sHead}, 1')
    A(f'    s_mov_b32 s{sCnt}, {GPH // NBUF}')
    A(f'    v_mov_b32 v{vM}, v{vM+1}')
    A('    s_branch L_vhead')
    if sampler:
        A('L_sampler:')
        A('    s_lshl_b32 s82, s2, 12')
        A(f'    s_add_u32 s82, s82, {WS_DIAG + 65536}')
        A('    s_add_u32 s83, s82, 4096')
        A('    v_mov_b32 v6, 0')
        A('L_s_loop:')
        A(f'    ds_read_b32 v5, v{vcb} offset:{PROG}')
        A('    s_memrealtime s[84:85]')
        A('    s_waitcnt lgkmcnt(0)')
        A('    s_cmp_ge_u32 s82, s83')
        A('    s_cbranch_scc1 L_end')
        A('    v_mov_b32 v14, s84')
        A('    v_mov_b32 v15, v5')
        A('    s_mov_b64 exec, 1')
        A('    buffer_store_dwordx2 v[14:15], v6, s[28:31], s82 offen')
        A('    s_mov_b64 exec, -1')
        A('    s_add_u32 s82, s82, 8')
        A('    v_readfirstlane_b32 s62, v5')
        A('    s_cmp_ge_u32 s62, 512')
        A('    s_cbranch_scc1 L_end')
        A('    s_sleep 8')
        A('    s_branch L_s_loop')
    A('L_end:')
    A('    s_endpgm')
    A('L_code_end:')
    A('    s_endpgm')
    A('.section .rodata,"a"')
    A('.p2align 6')
    A(f'.amdhsa_kernel {NAME}')
    A(f'  .amdhsa_next_free_vgpr {nv}')
    A('  .amdhsa_next_free_sgpr 88')
    A(f'  .amdhsa_accum_offset {(nv + 3) // 4 * 4}')
    A('  .amdhsa_group_segment_fixed_size 0')
    A('  .amdhsa_kernarg_size 48')
    A('  .amdhsa_user_sgpr_count 2')
    A('  .amdhsa_user_sgpr_kernarg_segment_ptr 1')
    A('  .amdhsa_system_sgpr_workgroup_id_x 1')
    A('  .amdhsa_float_denorm_mode_32 3')
    A('.end_amdhsa_kernel')
    return '\n'.join(L) + '\n'

if __name__ == '__main__':
    ap = argparse.ArgumentParser()
    ap.add_argument('out')
    ap.add_argument('--W', type=int, default=4)
    ap.add_argument('--NBUF', type=int, default=4)
    ap.add_argument('--cap', type=int, default=6)
    ap.add_argument('--capv', type=int, default=None)
    ap.add_argument('--first', type=int, default=6)
    ap.add_argument('--policy', default='nt')
    ap.add_argument('--diag', action='store_true')
    ap.add_argument('--sampler', action='store_true')
    ap.add_argument('--codepf', action='store_true')
    ap.add_argument('--tail', type=int, default=0)
    ap.add_argument('--spread', action='store_true')
    ap.add_argument('--touch', action='store_true')
    ap.add_argument('--compact', action='store_true')
    ap.add_argument('--rotbits', default=None)
    ap.add_argument('--remap', type=int, default=0)
    ap.add_argument('--hx', type=int, default=0)
    ap.add_argument('--rotw', action='store_true')
    ap.add_argument('--perm', default=None)
    ap.add_argument('--frac', type=int, default=0)
    ap.add_argument('--fracv', type=int, default=None)
    ap.add_argument('--wdiag', action='store_true')
    ap.add_argument('--tailo', type=int, default=None)
    ap.add_argument('--hicap', type=int, default=0)
    ap.add_argument('--xorwg', type=int, default=0)
    ap.add_argument('--opol', default='')
    ap.add_argument('--procap', type=int, default=None)
    a = ap.parse_args()
    open(a.out, 'w').write(gen(a.W, a.NBUF, a.cap, a.capv, a.first, a.policy, a.diag or a.sampler, a.sampler, a.codepf, a.tail, a.spread, a.procap, a.touch, a.opol, a.compact, a.xorwg, a.tailo, a.hicap, a.wdiag, a.frac, a.fracv, [int(x) for x in a.perm.split(',')] if a.perm else None, a.rotw, [int(x) for x in a.rotbits.split(',')] if a.rotbits else None, a.remap, a.hx))
```

```python
import sys, argparse, struct

def f2u(x):
    return struct.unpack('<I', struct.pack('<f', x))[0]

HEADER = open('standalone__mha_softmax__sampling.s.ref').read().split('; Override launch')[0]
NAME = 'standalone__mha_softmax__sampling_kernel'

def gen(W=4, NBUF=4, cap=6, capv=None, first=6, policy='nt', diag=False, sampler=False, codepf=False, tail=0, spread=False, procap=None, touch=False, opol='', compact=False, xorwg=0, tailo=None, hicap=0, wdiag=False, frac=0, fracv=None, perm=None, rotw=False, rotbits=None, remap=0, hx=0, half=False):
    L = []
    A = L.append
    G = 256
    GPH = 128 // W
    STEP = W * 4096
    assert GPH % NBUF == 0
    if capv is None: capv = cap
    SCW = 2 * GPH * 256
    SC = W * SCW
    SL = W * 512 + 128
    MLO = W * 512
    CB = 2 * SL
    CNT, PROG = CB, CB + 16
    lds = max(81920 + 1024, SC + CB + 64)
    WS_DIAG = 8 << 20
    REG = 1 << 20
    pol = (' ' + policy) if policy else ''
    DPP = ' row_mask:0xf bank_mask:0xf'
    vOff, vQo, vL8 = 1, 2, 3
    vacc, vmx, vl, vt, vw, vx, vmn, vp, vone = 8, 16, 17, 18, 22, 23, 24, 26, 27
    vtmp = 28
    vcb, vOut, vLds, vneg = 36, 37, 38, 39
    vq = 40
    vM = 48
    vsc = 52
    vO4 = 56
    vml = 60
    vdat = vml + 2 * W
    vbuf = (vdat + 2 * W + 3) // 4 * 4
    def B(b, i): return vbuf + b * 16 + i * 4
    nv = vbuf + NBUF * 16
    NW = W + (1 if sampler else 0)
    sKo, sCnt, sHead = 44, 45, 46
    if perm is None: perm = [12, 13, 14, 15, 16, 17, 18]
    if len(perm) == 7: perm = [10, 11] + perm
    lbits, perm = perm[:2], perm[2:]
    assert sorted(lbits + perm) == list(range(10, 19)) and W == 4 and NBUF == 4
    ident = perm == [12, 13, 14, 15, 16, 17, 18] and not rotw and not half
    assert compact or not half
    limm = lbits == [10, 11]
    def LO(i): return ((i & 1) << lbits[0]) | ((i >> 1) << lbits[1])
    def U(u): return ((u & 1) << perm[2]) | ((u >> 1) << perm[3])
    sPh, sBs, sRot = 52, 53, 54
    def itbase():
        if ident: return
        A(f'    s_and_b32 s{sBs}, s{sKo}, 0x180000')
        if half: A(f'    s_lshl_b32 s{sBs}, s{sBs}, 8')
        for k in range(3):
            A(f'    s_bfe_u32 s62, s{sKo}, {(1 << 16) | (16 + k):#x}')
            A(f'    s_lshl_b32 s62, s62, {perm[4+k]}')
            A(f'    s_or_b32 s{sBs}, s{sBs}, s62')
        if rotw: A(f'    s_xor_b32 s{sBs}, s{sBs}, s{sRot}')
        if hx:
            A(f'    s_bfe_u32 s62, s{sKo}, 0x10013')
            A(f'    s_lshl_b32 s62, s62, {hx}')
            A(f'    s_xor_b32 s{sBs}, s{sBs}, s62')
    def phys(b):
        if ident: return
        A(f'    s_add_u32 s{sPh}, s{sBs}, {U(b)}')
    def rotinit():
        A(f'    s_mov_b32 s{sRot}, 0')
        if not rotw: return
        j = 0
        rb = rotbits or [3, 4, 5]
        for k in range(3):
            if perm[4+k] <= 14:
                A(f'    s_bfe_u32 s62, s2, {(1 << 16) | rb[j]:#x}')
                A(f'    s_lshl_b32 s62, s62, {perm[4+k]}')
                A(f'    s_or_b32 s{sRot}, s{sRot}, s62')
                j += 1
    A(HEADER.rstrip('\n'))
    A(f'; @launch grid=({G},1,1) block=({NW*64},1,1) lds={lds}')
    A('.amdgcn_target "amdgcn-amd-amdhsa--gfx950"')
    A('.text')
    A(f'.globl {NAME}')
    A('.p2align 8')
    A(f'.type {NAME},@function')
    A(f'{NAME}:')
    if diag:
        A('    s_memrealtime s[70:71]')
    if compact:
        assert not sampler and not spread
        A('    s_load_dwordx4 s[4:7], s[0:1], 0        ; q, k')
        A('    v_and_b32 v5, 63, v0                    ; lane')
        A('    v_lshrrev_b32 v4, 6, v0')
        A(f'    v_lshlrev_b32 v{vOff}, 4, v5')
        if ident or perm[1] == perm[0] + 1:
            A(f'    v_lshl_add_u32 v{vOff}, v4, {perm[0]}, v{vOff}')
        else:
            A('    v_and_b32 v6, 1, v4')
            A(f'    v_lshl_add_u32 v{vOff}, v6, {perm[0]}, v{vOff}')
            A('    v_lshrrev_b32 v6, 1, v4')
            A(f'    v_lshl_add_u32 v{vOff}, v6, {perm[1]}, v{vOff}')
        if not limm:
            A(f'    v_mov_b32 v{vO4}, v{vOff}')
            for i in range(1, 4):
                A(f'    v_add_u32 v{vO4+i}, {LO(i)}, v{vOff}')
        if remap == 1:
            A('    s_bfe_u32 s62, s2, 0x10003')
            A('    s_and_b32 s63, s2, 7')
            A('    s_lshl_b32 s63, s63, 1')
            A('    s_andn2_b32 s2, s2, 15')
            A('    s_or_b32 s2, s2, s62')
            A('    s_or_b32 s2, s2, s63')
        if remap == 2:
            A('    s_bfe_u32 s62, s2, 0x50003')
            A('    s_and_b32 s63, s2, 7')
            A('    s_lshl_b32 s63, s63, 5')
            A('    s_andn2_b32 s2, s2, 255')
            A('    s_or_b32 s2, s2, s62')
            A('    s_or_b32 s2, s2, s63')
        rotinit()
        if xorwg: A(f'    s_xor_b32 s2, s2, {xorwg}')
        A(f'    s_lshl_b32 s50, s2, {19 if half else 20}')
        A('    s_lshr_b32 s3, s2, 8')
        A('    s_cbranch_scc1 L_end')
        A('    s_mov_b32 s14, 0x8080000' if half else '    s_lshl_b32 s14, 1, 20')
        A('    s_mov_b32 s15, 0x00020000')
        A('    s_waitcnt lgkmcnt(0)')
        A('    s_add_u32 s12, s6, s50')
        A('    s_addc_u32 s13, s7, 0')
        A('    s_and_b32 s13, s13, 0xffff')
    else:
        A('    s_load_dwordx4 s[4:7], s[0:1], 0        ; q, k')
        A('    s_load_dwordx4 s[8:11], s[0:1], 16      ; v, out')
        if diag:
            A('    s_load_dwordx2 s[38:39], s[0:1], 40     ; ws')
        A(f'    s_cmp_ge_u32 s2, {G}')
        A('    s_cbranch_scc1 L_end')
        A('    v_lshrrev_b32 v4, 6, v0')
        A('    v_and_b32 v5, 63, v0                    ; lane')
        A('    v_readfirstlane_b32 s3, v4')
        A(f'    v_lshlrev_b32 v{vOff}, 4, v5')
        if spread:
            A(f'    v_lshlrev_b32 v{vO4}, 4, v0')
            for i in range(1, 4):
                A(f'    v_add_u32 v{vO4+i}, {i * W * 1024}, v{vO4}')
        else:
            A(f'    v_lshl_add_u32 v{vOff}, v4, 12, v{vOff}')
        A(f'    v_and_b32 v{vQo}, 15, v0')
        A(f'    v_lshlrev_b32 v{vQo}, 4, v{vQo}                ; (lane%16)*16')
        A('    s_lshl_b32 s50, s2, 20')
        A('    s_lshl_b32 s51, s2, 9')
        A(f'    s_mov_b32 s14, {REG}')
        A('    s_mov_b32 s15, 0x00020000')
        A('    s_mov_b32 s22, 512')
        A('    s_mov_b32 s23, 0x00020000')
        A(f'    s_mov_b32 s{sKo}, 0')
        A(f'    s_mov_b32 s47, {STEP}')
        A('    s_waitcnt lgkmcnt(0)')
        A('    s_add_u32 s12, s6, s50')
        A('    s_addc_u32 s13, s7, 0')
        A('    s_and_b32 s13, s13, 0xffff')
    if sampler:
        A(f'    s_cmp_eq_u32 s3, {W}')
        A('    s_cbranch_scc1 L_skip_first')
    curcap = [0]
    skipcap = [False]
    ncw = [0]
    fr = [0, 0]
    def capwait():
        if not curcap[0]: return
        save = curcap[0]
        fr[1] += abs(fr[0])
        if fr[1] >= 16:
            fr[1] -= 16
            curcap[0] += 1 if fr[0] > 0 else -1
        capwait2()
        curcap[0] = save
    def capwait2():
        if skipcap[0]:
            k = ncw[0]; ncw[0] += 1
            A(f'    s_cbranch_vccnz L_cw{k}')
            A(f'    s_waitcnt vmcnt({curcap[0]-1})')
            A(f'L_cw{k}:')
            if hicap: A(f'    s_waitcnt vmcnt({hicap-1})')
        else:
            A(f'    s_waitcnt vmcnt({curcap[0]-1})')
    lso = [sKo]
    def ld(b, i, so=None):
        if so is None: so = lso[0]
        capwait()
        if spread or not limm:
            A(f'    buffer_load_dwordx4 v[{B(b,i)}:{B(b,i)+3}], v{vO4+i}, s[12:15], s{so} offen{pol}')
        else:
            A(f'    buffer_load_dwordx4 v[{B(b,i)}:{B(b,i)+3}], v{vOff}, s[12:15], s{so} offen offset:{i*1024}{pol}')
    assert 4 <= first <= 8
    for n in range(first):
        if compact and n < 4:
            ld(0, n, sRot)
            continue
        if compact and n == 4:
            A(f'    s_add_u32 s47, s{sRot}, {U(1)}')
        ld(n // 4, n % 4, sKo if n < 4 else 47)
    if compact:
        A('    s_load_dwordx4 s[8:11], s[0:1], 16      ; v, out')
        if diag:
            A('    s_load_dwordx2 s[38:39], s[0:1], 40     ; ws')
        A('    v_readfirstlane_b32 s3, v4')
        A(f'    v_and_b32 v{vQo}, 15, v0')
        A(f'    v_lshlrev_b32 v{vQo}, 4, v{vQo}                ; (lane%16)*16')
        A(f'    s_lshl_b32 s51, s2, {8 if half else 9}')
        A(f'    s_mov_b32 s22, {0x10100 if half else 512}')
        A('    s_mov_b32 s23, 0x00020000')
        if half: A('    s_mov_b32 s55, 0x10000')
    if sampler: A('L_skip_first:')
    A('    s_add_u32 s20, s4, s51')
    A('    s_addc_u32 s21, s5, 0')
    A('    s_and_b32 s21, s21, 0xffff')
    for h in range(2):
        if half and h: A(f'    buffer_load_dwordx4 v[{vq+4*h}:{vq+4*h+3}], v{vQo}, s[20:23], s55 offen')
        else: A(f'    buffer_load_dwordx4 v[{vq+4*h}:{vq+4*h+3}], v{vQo}, s[20:23], 0 offen offset:{256*h}')
    if codepf:
        A('    s_getpc_b64 s[62:63]')
        A('L_pfbase:')
        A('    v_lshlrev_b32 v6, 6, v0')
        A('    v_cmp_gt_u32 vcc, L_code_end-L_pfbase, v6')
        A('    s_and_saveexec_b64 s[64:65], vcc')
        A('    s_cbranch_execz L_nopf')
        A('    global_load_dword v7, v6, s[62:63]')
        A('L_nopf:')
        A('    s_mov_b64 exec, s[64:65]')
    if compact: A('    s_waitcnt lgkmcnt(0)')
    A('    s_add_u32 s16, s8, s50')
    A('    s_addc_u32 s17, s9, 0')
    A('    s_and_b32 s17, s17, 0xffff')
    if touch:
        A('    s_load_dword s62, s[16:17], 0')
    A('    s_add_u32 s24, s10, s51')
    A('    s_addc_u32 s25, s11, 0')
    A('    s_and_b32 s25, s25, 0xffff')
    A(f'    s_mov_b32 s26, {0x10100 if half else 512}')
    A('    s_mov_b32 s27, 0x00020000')
    if diag:
        A('    s_mov_b32 s28, s38')
        A('    s_and_b32 s29, s39, 0xffff')
        A(f'    s_mov_b32 s30, {WS_DIAG + 65536 + (2 << 20)}')
        A('    s_mov_b32 s31, 0x00020000')
    c = (128 ** -0.5) * 1.4426950408889634
    A(f'    s_mov_b32 s33, 0x{f2u(c):08x}           ; scale*log2(e)')
    A('    s_mov_b32 s34, 0xffff0000')
    if tailo is not None: A(f'    s_mov_b32 s49, {REG - tail * STEP}')
    A(f'    v_lshlrev_b32 v{vL8}, 3, v5                ; lane*8')
    A(f'    v_lshrrev_b32 v6, 4, v5')
    A(f'    v_lshl_add_u32 v{vOut}, v6, 2, v{vQo}')
    A(f'    v_lshlrev_b32 v{vLds}, 2, v5')
    A(f'    v_lshl_add_u32 v{vLds}, v4, {SCW.bit_length()-1}, v{vLds}')
    A(f'    v_mov_b32 v{vone}, 1')
    A(f'    v_mov_b32 v{vcb}, {SC}')
    A('    v_mov_b32 v6, 0')
    A('    v_mov_b32 v7, 0' if not codepf else '    s_nop 0')
    A(f'    ds_write_b32 v{vcb}, v6 offset:{CNT}')
    A(f'    ds_write_b32 v{vcb}, v6 offset:{CNT+4}')
    A(f'    ds_write_b32 v{vcb}, v6 offset:{PROG}')
    A(f'    v_mov_b32 v{vmx}, 0xff800000')
    A(f'    s_mov_b32 s{sHead}, 0')
    A(f'    s_mov_b32 s{sCnt}, {GPH // NBUF}')
    A('    s_waitcnt lgkmcnt(0)')
    A('    s_barrier')
    if sampler:
        A(f'    s_cmp_eq_u32 s3, {W}')
        A('    s_cbranch_scc1 L_sampler')
    curcap[0] = cap if procap is None else procap
    for n in range(first, 4 * NBUF):
        if n % 4 == 0 or n == first:
            A(f'    s_add_u32 s{sKo}, s{sRot}, {U(n // 4)}')
        ld(n // 4, n % 4)
    A(f'    s_mov_b32 s{sKo}, {NBUF * STEP}')
    A(f'    s_waitcnt vmcnt({4*NBUF - first})                     ; q landed')
    WD = 4 * (NBUF - 1)
    curcap[0] = cap
    def prog():
        if sampler:
            A('    s_mov_b64 exec, 1')
            A(f'    ds_add_u32 v{vcb}, v{vone} offset:{PROG}')
            A('    s_mov_b64 exec, -1')
    A('L_kloop:')
    fr[0] = frac; fr[1] = 0
    A(f'    s_cmp_lt_u32 s{sKo}, {REG}')
    A('    s_cbranch_scc1 L_kgo')
    A('    s_mov_b32 s12, s16')
    A('    s_mov_b32 s13, s17')
    A(f'    s_mov_b32 s{sKo}, 0')
    A('L_kgo:')
    itbase()
    lso[0] = sKo if ident else sPh
    for b in range(NBUF):
        prog()
        phys(b)
        if not cap or cap > WD: A(f'    s_waitcnt vmcnt({WD})')
        for i in range(4):
            A(f'    v_dot2_f32_bf16 v{vt+i}, v{B(b,i)}, v{vq}, 0')
        for w in range(1, 4):
            for i in range(4):
                A(f'    v_dot2_f32_bf16 v{vt+i}, v{B(b,i)+w}, v{vq+w}, v{vt+i}')
        ld(b, 0)
        A(f'    v_add_f32_dpp v{vt}, v{vt}, v{vt} row_ror:8 row_mask:0xf bank_mask:0x3')
        A(f'    v_add_f32_dpp v{vt+2}, v{vt+2}, v{vt+2} row_ror:8 row_mask:0xf bank_mask:0x3')
        A('    s_nop 0')
        A(f'    v_add_f32_dpp v{vt}, v{vt+1}, v{vt+1} row_ror:8 row_mask:0xf bank_mask:0xc')
        A(f'    v_add_f32_dpp v{vt+2}, v{vt+3}, v{vt+3} row_ror:8 row_mask:0xf bank_mask:0xc')
        ld(b, 1)
        A(f'    v_add_f32_dpp v{vw}, v{vt}, v{vt} row_ror:12 row_mask:0xf bank_mask:0x5')
        A('    s_nop 1')
        A(f'    v_add_f32_dpp v{vw}, v{vt+2}, v{vt+2} row_ror:4 row_mask:0xf bank_mask:0xa')
        A('    s_nop 0')
        ld(b, 2)
        A(f'    v_add_f32_dpp v{vw}, v{vw}, v{vw} quad_perm:[1,0,3,2]{DPP}')
        A('    s_nop 0')
        ld(b, 3)
        A(f'    v_add_f32_dpp v{vw}, v{vw}, v{vw} quad_perm:[2,3,0,1]{DPP}')
        A(f'    s_add_u32 s{sKo}, s{sKo}, {STEP}')
        A(f'    ds_write_b32 v{vLds}, v{vw} offset:{256*b}')
        A(f'    v_max_f32 v{vmx}, v{vmx}, v{vw}')
    A(f'    v_add_u32 v{vLds}, {256*NBUF}, v{vLds}')
    A(f'    s_sub_u32 s{sCnt}, s{sCnt}, 1')
    A(f'    s_cmp_lg_u32 s{sCnt}, 0')
    A('    s_cbranch_scc1 L_kloop')
    A(f'    v_max_f32_dpp v{vmx}, v{vmx}, v{vmx} row_ror:4{DPP}')
    A(f'    s_mov_b32 s{sCnt}, {GPH // NBUF}')
    A('    s_nop 0')
    A(f'    v_max_f32_dpp v{vmx}, v{vmx}, v{vmx} row_ror:8{DPP}')
    A(f'    v_mov_b32 v{vx}, v{vmx}')
    A('    s_nop 1')
    A(f'    v_permlane32_swap_b32 v{vx}, v{vmx}')
    A('    s_nop 1')
    A(f'    v_max_f32 v{vmx}, v{vx}, v{vmx}')
    A(f'    v_mov_b32 v{vx}, v{vmx}')
    A('    s_nop 1')
    A(f'    v_permlane16_swap_b32 v{vx}, v{vmx}')
    A('    s_nop 1')
    A(f'    v_max_f32 v{vmx}, v{vx}, v{vmx}')
    A(f'    v_mul_f32 v{vM+1}, s33, v{vmx}')
    A(f'    s_cmp_lg_u32 s{sHead}, 0')
    A('    s_cbranch_scc1 L_vstart')
    A(f'    s_mov_b32 s{sHead}, 1')
    A(f'    v_mov_b32 v{vM}, v{vM+1}')
    A(f'    v_mov_b32 v{vmx}, 0xff800000')
    for e in range(4):
        A(f'    v_mov_b32 v{vq+e}, v{vq+4+e}')
    A('    s_branch L_kloop')
    A('L_vstart:')
    if tailo is not None:
        A('    s_getreg_b32 s48, hwreg(HW_REG_XCC_ID)')
        A('    s_bitcmp1_b32 s48, 0')
        A(f'    s_cselect_b32 s48, {REG - tailo * STEP}, s49')
    A(f'    v_subrev_u32 v{vLds}, {SCW}, v{vLds}')
    A(f'    s_mov_b32 s{sHead}, 0')
    A(f'    ds_read_b32 v{vsc}, v{vLds}')
    A('L_vhead:')
    A(f'    v_sub_f32 v{vneg}, 0, v{vM}')
    for e in range(8):
        A(f'    v_mov_b32 v{vacc+e}, 0')
    A(f'    v_mov_b32 v{vl}, 0')
    curcap[0] = capv
    skipcap[0] = True
    A('L_vloop:')
    fr[0] = frac if fracv is None else fracv; fr[1] = 0
    if tailo is None:
        A(f'    s_cmp_ge_u32 s{sKo}, {REG - tail * STEP}')
    else:
        A(f'    s_cmp_ge_u32 s{sKo}, s48')
    A('    s_cselect_b64 vcc, -1, 0')
    src_lane = [0, 8, 4, 12]
    itbase()
    for b in range(NBUF):
        prog()
        phys(b)
        A(f'    ds_read_b32 v{vsc + (b+1) % NBUF}, v{vLds} offset:{256*(b+1)}')
        A('    s_waitcnt lgkmcnt(1)')
        A(f'    v_fma_f32 v{vp}, v{vsc+b}, s33, v{vneg}')
        A(f'    v_exp_f32 v{vp}, v{vp}')
        for i in range(4):
            A(f'    s_waitcnt vmcnt({4*NBUF-1})')
            for w in range(4):
                A(f'    v_lshlrev_b32 v{vtmp+2*w}, 16, v{B(b,i)+w}')
                A(f'    v_and_b32 v{vtmp+2*w+1}, s34, v{B(b,i)+w}')
            ld(b, i)
            for e in range(8):
                A(f'    v_fmac_f32_dpp v{vacc+e}, v{vp}, v{vtmp+e} row_newbcast:{src_lane[i]}{DPP}')
        A(f'    v_add_f32 v{vl}, v{vl}, v{vp}')
        A(f'    s_add_u32 s{sKo}, s{sKo}, {STEP}')
    A(f'    v_add_u32 v{vLds}, {256*NBUF}, v{vLds}')
    A(f'    s_sub_u32 s{sCnt}, s{sCnt}, 1')
    A(f'    s_cmp_lg_u32 s{sCnt}, 0')
    A('    s_cbranch_scc1 L_vloop')
    if wdiag:
        A('    s_memrealtime s[68:69]')
        A('    s_waitcnt lgkmcnt(0)')
        A('    v_mov_b32 v6, 0')
        A('    v_mov_b32 v7, s68')
        A('    s_lshl_b32 s64, s2, 5')
        A(f'    s_lshl_b32 s65, s{sHead}, 4')
        A('    s_add_u32 s64, s64, s65')
        A('    s_lshl_b32 s65, s3, 2')
        A('    s_add_u32 s64, s64, s65')
        A(f'    s_add_u32 s64, s64, {WS_DIAG + 8192}')
        A('    s_mov_b64 exec, 1')
        A('    buffer_store_dword v7, v6, s[28:31], s64 offen')
        A('    s_mov_b64 exec, -1')
    A(f'    s_mul_i32 s63, s{sHead}, {SL}')
    A(f'    s_add_u32 s63, s63, {SC}')
    A(f'    v_add_f32_dpp v{vl}, v{vl}, v{vl} row_ror:4{DPP}')
    for k in range(4):
        A(f'    v_permlane32_swap_b32 v{vacc+k}, v{vacc+k+4}')
    A(f'    v_add_f32_dpp v{vl}, v{vl}, v{vl} row_ror:8{DPP}')
    A('    s_lshl_b32 s64, s3, 9')
    A('    s_add_u32 s64, s64, s63')
    for k in range(4):
        A(f'    v_add_f32 v{vacc+k}, v{vacc+k}, v{vacc+k+4}')
    A(f'    v_mov_b32 v{vx}, v{vl}')
    A(f'    v_add_u32 v4, s64, v{vL8}')
    A('    s_lshl_b32 s64, s3, 3')
    A(f'    v_permlane16_swap_b32 v{vacc}, v{vacc+2}')
    A(f'    v_permlane16_swap_b32 v{vacc+1}, v{vacc+3}')
    A(f'    v_permlane32_swap_b32 v{vl}, v{vx}')
    A('    s_add_u32 s64, s64, s63')
    A('    v_mov_b32 v5, s64')
    A(f'    v_add_f32 v{vacc}, v{vacc}, v{vacc+2}')
    A(f'    v_add_f32 v{vacc+1}, v{vacc+1}, v{vacc+3}')
    A(f'    v_add_f32 v{vl}, v{vl}, v{vx}')
    A(f'    ds_write_b64 v4, v[{vacc}:{vacc+1}]')
    A(f'    v_mov_b32 v{vx}, v{vl}')
    A(f'    v_mov_b32 v{vmn}, v{vM}')
    A(f'    s_lshl_b32 s65, s{sHead}, 2')
    A(f'    v_permlane16_swap_b32 v{vl}, v{vx}')
    A(f'    v_add_u32 v6, s65, v{vcb}')
    A('    s_nop 0')
    A(f'    v_add_f32 v{vmn+1}, v{vl}, v{vx}')
    A(f'    ds_write_b64 v5, v[{vmn}:{vmn+1}] offset:{MLO}')
    A('    s_mov_b64 exec, 1')
    A(f'    ds_add_rtn_u32 v7, v6, v{vone} offset:{CNT}')
    A('    s_mov_b64 exec, -1')
    A('    s_waitcnt lgkmcnt(0)')
    A('    v_readfirstlane_b32 s66, v7')
    A(f'    v_add_u32 v4, s63, v{vL8}')
    A('    v_mov_b32 v5, s63')
    A(f'    s_cmp_lg_u32 s66, {W-1}')
    A('    s_cbranch_scc1 L_unit_ret')
    for e2 in range(W // 2):
        A(f'    ds_read_b128 v[{vml+4*e2}:{vml+4*e2+3}], v5 offset:{MLO+16*e2}')
    for e in range(W):
        A(f'    ds_read_b64 v[{vdat+2*e}:{vdat+2*e+1}], v4 offset:{512*e}')
    A(f'    s_waitcnt lgkmcnt({W})')
    A(f'    v_max_f32 v{vmn}, v{vml}, v{vml+2}')
    for e in range(2, W, 2):
        A(f'    v_max3_f32 v{vmn}, v{vmn}, v{vml+2*e}, v{vml+2*e+2}')
    for e in range(W):
        A(f'    v_sub_f32 v{vml+2*e}, v{vml+2*e}, v{vmn}')
    for e in range(W):
        A(f'    v_exp_f32 v{vml+2*e}, v{vml+2*e}')
    A(f'    s_lshl_b32 s64, s{sHead}, {16 if half else 8}')
    A(f'    v_mul_f32 v{vl}, v{vml}, v{vml+1}')
    for e in range(1, W):
        A(f'    v_fmac_f32 v{vl}, v{vml+2*e}, v{vml+2*e+1}')
    A(f'    v_rcp_f32 v{vx}, v{vl}')
    A('    s_waitcnt lgkmcnt(0)')
    A(f'    v_mul_f32 v{vt}, v{vml}, v{vdat}')
    A(f'    v_mul_f32 v{vt+1}, v{vml}, v{vdat+1}')
    for e in range(1, W):
        A(f'    v_fmac_f32 v{vt}, v{vml+2*e}, v{vdat+2*e}')
        A(f'    v_fmac_f32 v{vt+1}, v{vml+2*e}, v{vdat+2*e+1}')
    A(f'    v_mul_f32 v{vt}, v{vt}, v{vx}')
    A(f'    v_mul_f32 v{vt+1}, v{vt+1}, v{vx}')
    A(f'    v_cvt_pk_bf16_f32 v7, v{vt}, v{vt+1}')
    A(f'    buffer_store_dword v7, v{vOut}, s[24:27], s64 offen' + (' ' + opol if opol else ''))
    if diag:
        A('    s_memrealtime s[68:69]')
        A('    s_getreg_b32 s62, hwreg(HW_REG_XCC_ID)')
        A('    s_waitcnt lgkmcnt(0)')
        A('    s_or_b32 s62, s62, 0x100')
        A(f'    v_mov_b32 v{vml}, s70')
        A(f'    v_mov_b32 v{vml+1}, s62')
        A(f'    v_mov_b32 v{vml+2}, s68')
        A('    s_getreg_b32 s62, hwreg(HW_REG_HW_ID)')
        A(f'    v_mov_b32 v{vml+3}, s62')
        A('    v_mov_b32 v6, 0')
        A('    s_lshl_b32 s64, s2, 5')
        A(f'    s_lshl_b32 s65, s{sHead}, 4')
        A('    s_add_u32 s64, s64, s65')
        A(f'    s_add_u32 s64, s64, {WS_DIAG}')
        A('    s_mov_b64 exec, 1')
        A(f'    buffer_store_dwordx4 v[{vml}:{vml+3}], v6, s[28:31], s64 offen')
        A('    s_mov_b64 exec, -1')
    A('L_unit_ret:')
    A(f'    s_cmp_lg_u32 s{sHead}, 0')
    A('    s_cbranch_scc1 L_end')
    A(f'    s_mov_b32 s{sHead}, 1')
    A(f'    s_mov_b32 s{sCnt}, {GPH // NBUF}')
    A(f'    v_mov_b32 v{vM}, v{vM+1}')
    A('    s_branch L_vhead')
    if sampler:
        A('L_sampler:')
        A('    s_lshl_b32 s82, s2, 12')
        A(f'    s_add_u32 s82, s82, {WS_DIAG + 65536}')
        A('    s_add_u32 s83, s82, 4096')
        A('    v_mov_b32 v6, 0')
        A('L_s_loop:')
        A(f'    ds_read_b32 v5, v{vcb} offset:{PROG}')
        A('    s_memrealtime s[84:85]')
        A('    s_waitcnt lgkmcnt(0)')
        A('    s_cmp_ge_u32 s82, s83')
        A('    s_cbranch_scc1 L_end')
        A('    v_mov_b32 v14, s84')
        A('    v_mov_b32 v15, v5')
        A('    s_mov_b64 exec, 1')
        A('    buffer_store_dwordx2 v[14:15], v6, s[28:31], s82 offen')
        A('    s_mov_b64 exec, -1')
        A('    s_add_u32 s82, s82, 8')
        A('    v_readfirstlane_b32 s62, v5')
        A('    s_cmp_ge_u32 s62, 512')
        A('    s_cbranch_scc1 L_end')
        A('    s_sleep 8')
        A('    s_branch L_s_loop')
    A('L_end:')
    A('    s_endpgm')
    A('L_code_end:')
    A('    s_endpgm')
    A('.section .rodata,"a"')
    A('.p2align 6')
    A(f'.amdhsa_kernel {NAME}')
    A(f'  .amdhsa_next_free_vgpr {nv}')
    A('  .amdhsa_next_free_sgpr 88')
    A(f'  .amdhsa_accum_offset {(nv + 3) // 4 * 4}')
    A('  .amdhsa_group_segment_fixed_size 0')
    A('  .amdhsa_kernarg_size 48')
    A('  .amdhsa_user_sgpr_count 2')
    A('  .amdhsa_user_sgpr_kernarg_segment_ptr 1')
    A('  .amdhsa_system_sgpr_workgroup_id_x 1')
    A('  .amdhsa_float_denorm_mode_32 3')
    A('.end_amdhsa_kernel')
    return '\n'.join(L) + '\n'

if __name__ == '__main__':
    ap = argparse.ArgumentParser()
    ap.add_argument('out')
    ap.add_argument('--W', type=int, default=4)
    ap.add_argument('--NBUF', type=int, default=4)
    ap.add_argument('--cap', type=int, default=6)
    ap.add_argument('--capv', type=int, default=None)
    ap.add_argument('--first', type=int, default=6)
    ap.add_argument('--policy', default='nt')
    ap.add_argument('--diag', action='store_true')
    ap.add_argument('--sampler', action='store_true')
    ap.add_argument('--codepf', action='store_true')
    ap.add_argument('--tail', type=int, default=0)
    ap.add_argument('--spread', action='store_true')
    ap.add_argument('--touch', action='store_true')
    ap.add_argument('--compact', action='store_true')
    ap.add_argument('--half', action='store_true')
    ap.add_argument('--rotbits', default=None)
    ap.add_argument('--remap', type=int, default=0)
    ap.add_argument('--hx', type=int, default=0)
    ap.add_argument('--rotw', action='store_true')
    ap.add_argument('--perm', default=None)
    ap.add_argument('--frac', type=int, default=0)
    ap.add_argument('--fracv', type=int, default=None)
    ap.add_argument('--wdiag', action='store_true')
    ap.add_argument('--tailo', type=int, default=None)
    ap.add_argument('--hicap', type=int, default=0)
    ap.add_argument('--xorwg', type=int, default=0)
    ap.add_argument('--opol', default='')
    ap.add_argument('--procap', type=int, default=None)
    a = ap.parse_args()
    open(a.out, 'w').write(gen(a.W, a.NBUF, a.cap, a.capv, a.first, a.policy, a.diag or a.sampler, a.sampler, a.codepf, a.tail, a.spread, a.procap, a.touch, a.opol, a.compact, a.xorwg, a.tailo, a.hicap, a.wdiag, a.frac, a.fracv, [int(x) for x in a.perm.split(',')] if a.perm else None, a.rotw, [int(x) for x in a.rotbits.split(',')] if a.rotbits else None, a.remap, a.hx, a.half))
```

```python
import sys, argparse, struct

def f2u(x):
    return struct.unpack('<I', struct.pack('<f', x))[0]

HEADER = open('standalone__mha_softmax__sampling.s.ref').read().split('; Override launch')[0]
NAME = 'standalone__mha_softmax__sampling_kernel'

def gen(cap=5, procap=8, tail=8, efrac=8, perm=(12, 13, 15, 16, 17, 18, 14), rotbit=0, hx=0, half=False,
        diag=False, ctl=True, th=0, thg=0, glob=True, relay=False, fsleep=8, lsleep=8, fpol='sc1', NL=8, pergroup=False, gsp=4, gper=4, gst='sc1', gld='sc1', master=False, msleep=16, mlanes=32, direct=False, median=False, be=8, bo=8, touch=False):
    L = []
    A = L.append
    W, NBUF, G = 4, 4, 256
    GPH = 32
    STEP = 16384
    SCW = 2 * GPH * 256
    SC = W * SCW
    SL = W * 512 + 128
    MLO = W * 512
    CB = 2 * SL
    CNT, PROG, FLAG = CB, CB + 16, CB + 20
    lds = 81920 + 1024
    WS_DIAG = 8 << 20
    REG = 1 << 20
    DPP = ' row_mask:0xf bank_mask:0xf'
    vOff, vQo, vL8 = 1, 2, 3
    vacc, vmx, vl, vt, vw, vx, vmn, vp, vone = 8, 16, 17, 18, 22, 23, 24, 26, 27
    vtmp = 28
    vcb, vOut, vLds, vneg = 36, 37, 38, 39
    vq, vM, vfl, vsc, vml = 40, 48, 50, 52, 56
    vdat = vml + 8
    vbuf = vdat + 8
    def B(b, i): return vbuf + b * 16 + i * 4
    nv = vbuf + 64
    sKo, sCnt, sHead, sPh, sBs, sRot, sFl = 44, 45, 46, 52, 53, 54, 56
    perm = list(perm)
    assert sorted(perm) == list(range(12, 19))
    def U(u): return ((u & 1) << perm[2]) | ((u >> 1) << perm[3])
    NW = W + (1 if ctl else 0)
    A(HEADER.rstrip('\n'))
    A(f'; @launch grid=({G},1,1) block=({NW*64},1,1) lds={lds}')
    A('.amdgcn_target "amdgcn-amd-amdhsa--gfx950"')
    A('.text')
    A(f'.globl {NAME}')
    A('.p2align 8')
    A(f'.type {NAME},@function')
    A(f'{NAME}:')
    if diag: A('    s_memrealtime s[70:71]')
    A('    s_load_dwordx4 s[4:7], s[0:1], 0        ; q, k')
    A('    v_lshrrev_b32 v4, 6, v0')
    A('    v_and_b32 v5, 63, v0                    ; lane')
    A('    v_readfirstlane_b32 s3, v4')
    A(f'    v_lshlrev_b32 v{vOff}, 4, v5')
    if perm[1] == perm[0] + 1:
        A(f'    v_lshl_add_u32 v{vOff}, v4, {perm[0]}, v{vOff}')
    else:
        A('    v_and_b32 v6, 1, v4')
        A(f'    v_lshl_add_u32 v{vOff}, v6, {perm[0]}, v{vOff}')
        A('    v_lshrrev_b32 v6, 1, v4')
        A(f'    v_lshl_add_u32 v{vOff}, v6, {perm[1]}, v{vOff}')
    slow = [p for p in perm[4:] if p <= 14]
    if rotbit is not None and slow:
        A(f'    s_bfe_u32 s{sRot}, s2, {(1 << 16) | rotbit:#x}')
        A(f'    s_lshl_b32 s{sRot}, s{sRot}, {slow[-1]}')
    else:
        A(f'    s_mov_b32 s{sRot}, 0')
    A(f'    s_lshl_b32 s50, s2, {19 if half else 20}')
    A('    s_lshr_b32 s62, s2, 8')
    A('    s_cbranch_scc1 L_end')
    A('    s_mov_b32 s14, 0x8080000' if half else '    s_lshl_b32 s14, 1, 20')
    A('    s_mov_b32 s15, 0x00020000')
    A('    s_waitcnt lgkmcnt(0)')
    A('    s_add_u32 s12, s6, s50')
    A('    s_addc_u32 s13, s7, 0')
    A('    s_and_b32 s13, s13, 0xffff')
    if ctl:
        A(f'    s_cmp_eq_u32 s3, {W}')
        A('    s_cbranch_scc1 L_control')
    curcap = [0]; skipcap = [False]; ncw = [0]; ef = [0, 0]
    def capwait():
        if not curcap[0]: return
        ef[1] += ef[0]
        k = ncw[0]; ncw[0] += 1
        if ef[1] >= 16:
            ef[1] -= 16
            if skipcap[0]: A(f'    s_cbranch_vccnz L_cw{k}')
            A(f'    s_waitcnt vmcnt({curcap[0]})')
            A(f'    s_cmp_lg_u32 s{sFl}, 0')
            A(f'    s_cbranch_scc1 L_cw{k}')
            A(f'    s_waitcnt vmcnt({curcap[0]-1})')
            A(f'L_cw{k}:')
        elif skipcap[0]:
            A(f'    s_cbranch_vccnz L_cw{k}')
            A(f'    s_waitcnt vmcnt({curcap[0]-1})')
            A(f'L_cw{k}:')
        else:
            A(f'    s_waitcnt vmcnt({curcap[0]-1})')
    def ld(b, i, so):
        capwait()
        A(f'    buffer_load_dwordx4 v[{B(b,i)}:{B(b,i)+3}], v{vOff}, s[12:15], s{so} offen offset:{i*1024} nt')
    for i in range(4): ld(0, i, sRot)
    A(f'    s_add_u32 s{sPh}, s{sRot}, {U(1)}')
    for i in range(4): ld(1, i, sPh)
    A('    s_load_dwordx4 s[8:11], s[0:1], 16      ; v, out')
    if diag: A('    s_load_dwordx2 s[38:39], s[0:1], 40     ; ws')
    A(f'    v_and_b32 v{vQo}, 15, v0')
    A(f'    v_lshlrev_b32 v{vQo}, 4, v{vQo}                 ; (lane%16)*16')
    A(f'    s_lshl_b32 s51, s2, {8 if half else 9}')
    A(f'    s_mov_b32 s22, {0x10100 if half else 512}')
    A('    s_mov_b32 s23, 0x00020000')
    A(f'    s_mov_b32 s55, {0x10000 if half else 256}')
    A('    s_add_u32 s20, s4, s51')
    A('    s_addc_u32 s21, s5, 0')
    A('    s_and_b32 s21, s21, 0xffff')
    A(f'    buffer_load_dwordx4 v[{vq}:{vq+3}], v{vQo}, s[20:23], 0 offen')
    A(f'    buffer_load_dwordx4 v[{vq+4}:{vq+7}], v{vQo}, s[20:23], s55 offen')
    c = (128 ** -0.5) * 1.4426950408889634
    A(f'    s_mov_b32 s33, 0x{f2u(c):08x}            ; scale*log2(e)')
    A('    s_mov_b32 s34, 0xffff0000')
    A(f'    v_lshlrev_b32 v{vL8}, 3, v5                 ; lane*8')
    A('    v_lshrrev_b32 v6, 4, v5')
    A(f'    v_lshl_add_u32 v{vOut}, v6, 2, v{vQo}')
    A(f'    v_lshlrev_b32 v{vLds}, 2, v5')
    A(f'    v_lshl_add_u32 v{vLds}, v4, {SCW.bit_length()-1}, v{vLds}')
    A(f'    v_mov_b32 v{vone}, 1')
    A(f'    v_mov_b32 v{vcb}, {SC}')
    A(f'    v_mov_b32 v{vfl}, 0')
    if not ctl:
        A(f'    ds_write_b32 v{vcb}, v{vfl} offset:{CNT}')
        A(f'    ds_write_b32 v{vcb}, v{vfl} offset:{CNT+4}')
    A(f'    v_mov_b32 v{vmx}, 0xff800000')
    A(f'    s_mov_b32 s{sHead}, 0')
    A(f'    s_mov_b32 s{sCnt}, {GPH // NBUF}')
    A(f'    s_mov_b32 s{sFl}, 0')
    A('    s_waitcnt lgkmcnt(0)')
    A('    s_add_u32 s16, s8, s50')
    A('    s_addc_u32 s17, s9, 0')
    A('    s_and_b32 s17, s17, 0xffff')
    A('    s_add_u32 s24, s10, s51')
    A('    s_addc_u32 s25, s11, 0')
    A('    s_and_b32 s25, s25, 0xffff')
    A(f'    s_mov_b32 s26, {0x10100 if half else 512}')
    A('    s_mov_b32 s27, 0x00020000')
    if diag:
        A('    s_mov_b32 s28, s38')
        A('    s_and_b32 s29, s39, 0xffff')
        A(f'    s_mov_b32 s30, {WS_DIAG + 65536}')
        A('    s_mov_b32 s31, 0x00020000')
    curcap[0] = procap
    for b in (2, 3):
        A(f'    s_add_u32 s{sPh}, s{sRot}, {U(b)}')
        for i in range(4): ld(b, i, sPh)
    A(f'    s_mov_b32 s{sKo}, {NBUF * STEP}')
    A('    s_barrier')
    A('    s_waitcnt vmcnt(8)                      ; q landed')
    if touch and half:
        A('    s_add_u32 s72, s12, 0x8000000')
        A('    s_addc_u32 s73, s13, 0')
        A('    s_load_dword s74, s[72:73], 0')
    curcap[0] = cap
    def itbase():
        A(f'    s_and_b32 s{sBs}, s{sKo}, 0x180000')
        if half: A(f'    s_lshl_b32 s{sBs}, s{sBs}, 8')
        for k in range(3):
            A(f'    s_bfe_u32 s62, s{sKo}, {(1 << 16) | (16 + k):#x}')
            A(f'    s_lshl_b32 s62, s62, {perm[4+k]}')
            A(f'    s_or_b32 s{sBs}, s{sBs}, s62')
        A(f'    s_xor_b32 s{sBs}, s{sBs}, s{sRot}')
        if hx:
            A(f'    s_bfe_u32 s62, s{sKo}, 0x10013')
            A(f'    s_lshl_b32 s62, s62, {hx}')
            A(f'    s_xor_b32 s{sBs}, s{sBs}, s62')
    def prog():
        if ctl:
            A('    s_mov_b64 exec, 1')
            A(f'    ds_add_u32 v{vcb}, v{vone} offset:{PROG}')
            A('    s_mov_b64 exec, -1')
    A('L_kloop:')
    ef[0] = efrac if ctl else 0; ef[1] = 0
    A(f'    s_cmp_lt_u32 s{sKo}, {REG}')
    A('    s_cbranch_scc1 L_kgo')
    A('    s_mov_b32 s12, s16')
    A('    s_mov_b32 s13, s17')
    A(f'    s_mov_b32 s{sKo}, 0')
    A('L_kgo:')
    itbase()
    for b in range(NBUF):
        prog()
        rd = ctl and (pergroup or b % 2 == 0)
        if rd: A(f'    ds_read_b32 v{vfl}, v{vcb} offset:{FLAG}')
        A(f'    s_add_u32 s{sPh}, s{sBs}, {U(b)}')
        for i in range(4):
            A(f'    v_dot2_f32_bf16 v{vt+i}, v{B(b,i)}, v{vq}, 0')
        for w in range(1, 4):
            for i in range(4):
                A(f'    v_dot2_f32_bf16 v{vt+i}, v{B(b,i)+w}, v{vq+w}, v{vt+i}')
        if rd:
            A('    s_waitcnt lgkmcnt(0)')
            A(f'    v_readfirstlane_b32 s{sFl}, v{vfl}')
        ld(b, 0, sPh)
        A(f'    v_add_f32_dpp v{vt}, v{vt}, v{vt} row_ror:8 row_mask:0xf bank_mask:0x3')
        A(f'    v_add_f32_dpp v{vt+2}, v{vt+2}, v{vt+2} row_ror:8 row_mask:0xf bank_mask:0x3')
        A('    s_nop 0')
        A(f'    v_add_f32_dpp v{vt}, v{vt+1}, v{vt+1} row_ror:8 row_mask:0xf bank_mask:0xc')
        A(f'    v_add_f32_dpp v{vt+2}, v{vt+3}, v{vt+3} row_ror:8 row_mask:0xf bank_mask:0xc')
        ld(b, 1, sPh)
        A(f'    v_add_f32_dpp v{vw}, v{vt}, v{vt} row_ror:12 row_mask:0xf bank_mask:0x5')
        A('    s_nop 1')
        A(f'    v_add_f32_dpp v{vw}, v{vt+2}, v{vt+2} row_ror:4 row_mask:0xf bank_mask:0xa')
        A('    s_nop 0')
        ld(b, 2, sPh)
        A(f'    v_add_f32_dpp v{vw}, v{vw}, v{vw} quad_perm:[1,0,3,2]{DPP}')
        A('    s_nop 0')
        ld(b, 3, sPh)
        A(f'    v_add_f32_dpp v{vw}, v{vw}, v{vw} quad_perm:[2,3,0,1]{DPP}')
        A(f'    s_add_u32 s{sKo}, s{sKo}, {STEP}')
        A(f'    ds_write_b32 v{vLds}, v{vw} offset:{256*b}')
        A(f'    v_max_f32 v{vmx}, v{vmx}, v{vw}')
    A(f'    v_add_u32 v{vLds}, {256*NBUF}, v{vLds}')
    A(f'    s_sub_u32 s{sCnt}, s{sCnt}, 1')
    A(f'    s_cmp_lg_u32 s{sCnt}, 0')
    A('    s_cbranch_scc1 L_kloop')
    A(f'    v_max_f32_dpp v{vmx}, v{vmx}, v{vmx} row_ror:4{DPP}')
    A(f'    s_mov_b32 s{sCnt}, {GPH // NBUF}')
    A('    s_nop 0')
    A(f'    v_max_f32_dpp v{vmx}, v{vmx}, v{vmx} row_ror:8{DPP}')
    A(f'    v_mov_b32 v{vx}, v{vmx}')
    A('    s_nop 1')
    A(f'    v_permlane32_swap_b32 v{vx}, v{vmx}')
    A('    s_nop 1')
    A(f'    v_max_f32 v{vmx}, v{vx}, v{vmx}')
    A(f'    v_mov_b32 v{vx}, v{vmx}')
    A('    s_nop 1')
    A(f'    v_permlane16_swap_b32 v{vx}, v{vmx}')
    A('    s_nop 1')
    A(f'    v_max_f32 v{vmx}, v{vx}, v{vmx}')
    A(f'    v_mul_f32 v{vM+1}, s33, v{vmx}')
    A(f'    s_cmp_lg_u32 s{sHead}, 0')
    A('    s_cbranch_scc1 L_vstart')
    A(f'    s_mov_b32 s{sHead}, 1')
    A(f'    v_mov_b32 v{vM}, v{vM+1}')
    A(f'    v_mov_b32 v{vmx}, 0xff800000')
    for e in range(4):
        A(f'    v_mov_b32 v{vq+e}, v{vq+4+e}')
    if touch:
        A('    s_load_dword s74, s[16:17], 0')
        if half:
            A('    s_add_u32 s72, s16, 0x8000000')
            A('    s_addc_u32 s73, s17, 0')
            A('    s_load_dword s75, s[72:73], 0')
    A('    s_branch L_kloop')
    A('L_vstart:')
    A(f'    v_subrev_u32 v{vLds}, {SCW}, v{vLds}')
    A(f'    s_mov_b32 s{sHead}, 0')
    A(f'    ds_read_b32 v{vsc}, v{vLds}')
    A('L_vhead:')
    A(f'    v_sub_f32 v{vneg}, 0, v{vM}')
    for e in range(8):
        A(f'    v_mov_b32 v{vacc+e}, 0')
    A(f'    v_mov_b32 v{vl}, 0')
    skipcap[0] = True
    A('L_vloop:')
    ef[1] = 0
    A(f'    s_cmp_ge_u32 s{sKo}, {REG - tail * STEP}')
    A('    s_cselect_b64 vcc, -1, 0')
    itbase()
    src_lane = [0, 8, 4, 12]
    for b in range(NBUF):
        A('    s_waitcnt lgkmcnt(0)')
        if ctl: A(f'    v_readfirstlane_b32 s{sFl}, v{vfl}')
        A(f'    v_fma_f32 v{vp}, v{vsc+b}, s33, v{vneg}')
        prog()
        A(f'    ds_read_b32 v{vsc + (b+1) % NBUF}, v{vLds} offset:{256*(b+1)}')
        if ctl and (pergroup or b % 2 == 0): A(f'    ds_read_b32 v{vfl}, v{vcb} offset:{FLAG}')
        A(f'    v_exp_f32 v{vp}, v{vp}')
        A(f'    s_add_u32 s{sPh}, s{sBs}, {U(b)}')
        for i in range(4):
            A(f'    s_waitcnt vmcnt({4*NBUF-1})')
            for w in range(4):
                A(f'    v_lshlrev_b32 v{vtmp+2*w}, 16, v{B(b,i)+w}')
                A(f'    v_and_b32 v{vtmp+2*w+1}, s34, v{B(b,i)+w}')
            ld(b, i, sPh)
            for e in range(8):
                A(f'    v_fmac_f32_dpp v{vacc+e}, v{vp}, v{vtmp+e} row_newbcast:{src_lane[i]}{DPP}')
        A(f'    v_add_f32 v{vl}, v{vl}, v{vp}')
        A(f'    s_add_u32 s{sKo}, s{sKo}, {STEP}')
    A(f'    v_add_u32 v{vLds}, {256*NBUF}, v{vLds}')
    A(f'    s_sub_u32 s{sCnt}, s{sCnt}, 1')
    A(f'    s_cmp_lg_u32 s{sCnt}, 0')
    A('    s_cbranch_scc1 L_vloop')
    A(f'    s_mul_i32 s63, s{sHead}, {SL}')
    A(f'    s_add_u32 s63, s63, {SC}')
    A(f'    v_add_f32_dpp v{vl}, v{vl}, v{vl} row_ror:4{DPP}')
    for k in range(4):
        A(f'    v_permlane32_swap_b32 v{vacc+k}, v{vacc+k+4}')
    A(f'    v_add_f32_dpp v{vl}, v{vl}, v{vl} row_ror:8{DPP}')
    A('    s_lshl_b32 s64, s3, 9')
    A('    s_add_u32 s64, s64, s63')
    for k in range(4):
        A(f'    v_add_f32 v{vacc+k}, v{vacc+k}, v{vacc+k+4}')
    A(f'    v_mov_b32 v{vx}, v{vl}')
    A(f'    v_add_u32 v4, s64, v{vL8}')
    A('    s_lshl_b32 s64, s3, 3')
    A(f'    v_permlane16_swap_b32 v{vacc}, v{vacc+2}')
    A(f'    v_permlane16_swap_b32 v{vacc+1}, v{vacc+3}')
    A(f'    v_permlane32_swap_b32 v{vl}, v{vx}')
    A('    s_add_u32 s64, s64, s63')
    A('    v_mov_b32 v5, s64')
    A(f'    v_add_f32 v{vacc}, v{vacc}, v{vacc+2}')
    A(f'    v_add_f32 v{vacc+1}, v{vacc+1}, v{vacc+3}')
    A(f'    v_add_f32 v{vl}, v{vl}, v{vx}')
    A(f'    ds_write_b64 v4, v[{vacc}:{vacc+1}]')
    A(f'    v_mov_b32 v{vx}, v{vl}')
    A(f'    v_mov_b32 v{vmn}, v{vM}')
    A(f'    s_lshl_b32 s65, s{sHead}, 2')
    A(f'    v_permlane16_swap_b32 v{vl}, v{vx}')
    A(f'    v_add_u32 v6, s65, v{vcb}')
    A('    s_nop 0')
    A(f'    v_add_f32 v{vmn+1}, v{vl}, v{vx}')
    A(f'    ds_write_b64 v5, v[{vmn}:{vmn+1}] offset:{MLO}')
    A('    s_mov_b64 exec, 1')
    A(f'    ds_add_rtn_u32 v7, v6, v{vone} offset:{CNT}')
    A('    s_mov_b64 exec, -1')
    A('    s_waitcnt lgkmcnt(0)')
    A('    v_readfirstlane_b32 s66, v7')
    A(f'    v_add_u32 v4, s63, v{vL8}')
    A('    v_mov_b32 v5, s63')
    A(f'    s_cmp_lg_u32 s66, {W-1}')
    A('    s_cbranch_scc1 L_unit_ret')
    for e2 in range(W // 2):
        A(f'    ds_read_b128 v[{vml+4*e2}:{vml+4*e2+3}], v5 offset:{MLO+16*e2}')
    for e in range(W):
        A(f'    ds_read_b64 v[{vdat+2*e}:{vdat+2*e+1}], v4 offset:{512*e}')
    A(f'    s_waitcnt lgkmcnt({W})')
    A(f'    v_max_f32 v{vmn}, v{vml}, v{vml+2}')
    A(f'    v_max3_f32 v{vmn}, v{vmn}, v{vml+4}, v{vml+6}')
    for e in range(W):
        A(f'    v_sub_f32 v{vml+2*e}, v{vml+2*e}, v{vmn}')
    for e in range(W):
        A(f'    v_exp_f32 v{vml+2*e}, v{vml+2*e}')
    A(f'    s_mul_i32 s64, s{sHead}, s55')
    A(f'    v_mul_f32 v{vl}, v{vml}, v{vml+1}')
    for e in range(1, W):
        A(f'    v_fmac_f32 v{vl}, v{vml+2*e}, v{vml+2*e+1}')
    A(f'    v_rcp_f32 v{vx}, v{vl}')
    A('    s_waitcnt lgkmcnt(0)')
    A(f'    v_mul_f32 v{vt}, v{vml}, v{vdat}')
    A(f'    v_mul_f32 v{vt+1}, v{vml}, v{vdat+1}')
    for e in range(1, W):
        A(f'    v_fmac_f32 v{vt}, v{vml+2*e}, v{vdat+2*e}')
        A(f'    v_fmac_f32 v{vt+1}, v{vml+2*e}, v{vdat+2*e+1}')
    A(f'    v_mul_f32 v{vt}, v{vt}, v{vx}')
    A(f'    v_mul_f32 v{vt+1}, v{vt+1}, v{vx}')
    A(f'    v_cvt_pk_bf16_f32 v7, v{vt}, v{vt+1}')
    A(f'    buffer_store_dword v7, v{vOut}, s[24:27], s64 offen')
    if diag:
        A('    s_memrealtime s[68:69]')
        A('    s_getreg_b32 s62, hwreg(HW_REG_XCC_ID)')
        A(f'    ds_read_b32 v{vml+3}, v{vcb} offset:{FLAG+4}')
        A('    s_waitcnt lgkmcnt(0)')
        A('    s_or_b32 s62, s62, 0x100')
        A(f'    v_mov_b32 v{vml}, s70')
        A(f'    v_mov_b32 v{vml+1}, s62')
        A(f'    v_mov_b32 v{vml+2}, s68')
        A('    v_mov_b32 v6, 0')
        A('    s_lshl_b32 s64, s2, 5')
        A(f'    s_lshl_b32 s65, s{sHead}, 4')
        A('    s_add_u32 s64, s64, s65')
        A(f'    s_add_u32 s64, s64, {WS_DIAG}')
        A('    s_mov_b64 exec, 1')
        A(f'    buffer_store_dwordx4 v[{vml}:{vml+3}], v6, s[28:31], s64 offen')
        A('    s_mov_b64 exec, -1')
    A('L_unit_ret:')
    A(f'    s_cmp_lg_u32 s{sHead}, 0')
    A('    s_cbranch_scc1 L_end')
    A(f'    s_mov_b32 s{sHead}, 1')
    A(f'    s_mov_b32 s{sCnt}, {GPH // NBUF}')
    A(f'    v_mov_b32 v{vM}, v{vM+1}')
    A('    s_branch L_vhead')
    if ctl:
        DONE = 512 - 4 * (tail + NBUF)
        A('L_control:')
        A('    s_load_dwordx2 s[36:37], s[0:1], 32     ; debug')
        A(f'    v_mov_b32 v{vcb}, {SC}')
        A('    v_mov_b32 v8, 0')
        A('    v_mov_b32 v9, 0')
        A('    v_mov_b32 v10, 0')
        A('    v_mov_b32 v11, 0')
        A(f'    ds_write_b128 v{vcb}, v[8:11] offset:{CNT}')
        A(f'    ds_write_b128 v{vcb}, v[8:11] offset:{PROG}')
        A('    s_getreg_b32 s61, hwreg(HW_REG_XCC_ID)')
        A('    s_and_b32 s61, s61, 15')
        A('    s_lshl_b32 s61, s61, 2')
        A('    s_add_u32 s61, s61, 128')
        gbase = 0 if gsp == 4 else 4096
        A(f'    s_mul_i32 s60, s2, {gsp}')
        A(f'    s_add_u32 s60, s60, {gbase}')
        A(f'    v_mul_u32_u24 v12, {gsp}, v5')
        A(f'    v_add_u32 v12, {gbase}, v12')
        A(f'    s_mov_b32 s42, {256 if gsp == 4 else 65536}')
        A('    s_mov_b32 s43, 0x00020000')
        A('    s_mov_b32 s63, 0')
        A('    s_waitcnt lgkmcnt(0)')
        A('    s_mov_b32 s40, s36')
        A('    s_and_b32 s41, s37, 0xffff')
        A('    s_barrier')
        if median:
            A('    s_lshr_b32 s60, s2, 3')
            A('    s_lshl_b32 s60, s60, 2')
            A('    s_bitcmp1_b32 s61, 2')
            A(f'    s_cselect_b32 s59, {bo}, {be}')
            A('    s_mov_b32 s42, 128')
            A('L_med:')
            A(f'    s_sleep {fsleep}')
            A(f'    ds_read_b32 v10, v{vcb} offset:{PROG}')
            A(f'    buffer_load_dword v9, v12, s[40:43], 0 offen {fpol}')
            A('    s_waitcnt lgkmcnt(0)')
            A('    s_mov_b64 exec, 1')
            A('    buffer_store_dword v10, v8, s[40:43], s60 offen')
            A('    s_mov_b64 exec, -1')
            A(f'    v_add_u32 v11, {th}, v10' if th >= 0 else f'    v_subrev_u32 v11, {-th}, v10')
            A('    v_readfirstlane_b32 s62, v10')
            A('    s_waitcnt vmcnt(1)')
            A('    v_cmp_gt_i32 vcc, v9, v11')
            A('    v_cmp_ne_u32 s[64:65], 0, v9')
            A('    s_and_b64 vcc, vcc, s[64:65]')
            A('    s_bcnt1_i32_b64 s66, vcc')
            A('    s_bcnt1_i32_b64 s67, s[64:65]')
            A('    s_lshl_b32 s66, s66, 4')
            A('    s_mul_i32 s67, s67, s59')
            A('    s_cmp_gt_u32 s66, s67')
            A('    s_cselect_b32 s66, 1, 0')
            A('    v_mov_b32 v11, s66')
            A(f'    ds_write_b32 v{vcb}, v11 offset:{FLAG}')
            if diag:
                A('    v_lshlrev_b32 v11, 16, v11')
                A('    v_add_u32 v11, 1, v11')
                A('    s_mov_b64 exec, 1')
                A(f'    ds_add_u32 v{vcb}, v11 offset:{FLAG+4}')
                A('    s_mov_b64 exec, -1')
            A(f'    s_cmp_lt_u32 s62, {DONE + 16}')
            A('    s_cbranch_scc1 L_med')
            A('    s_endpgm')
        A(f'    s_cmp_lt_u32 s2, {(1 if direct else NL + 1) if master else NL}')
        if direct: A('    s_mov_b32 s61, 0')
        A('    s_cbranch_scc1 L_leader')
        A('    s_mov_b64 exec, 1')
        A('L_follow:')
        A(f'    s_sleep {fsleep}')
        A(f'    buffer_load_dword v9, v8, s[40:43], s61 offen {fpol}')
        A(f'    ds_read_b32 v10, v{vcb} offset:{PROG}')
        A('    s_waitcnt vmcnt(0) lgkmcnt(0)')
        A(f'    v_add_u32 v11, {th}, v10' if th >= 0 else f'    v_subrev_u32 v11, {-th}, v10')
        A('    v_readfirstlane_b32 s62, v10')
        A('    v_cmp_gt_i32 vcc, v9, v11')
        A('    s_nop 1')
        A('    v_cndmask_b32 v11, 0, 1, vcc')
        A(f'    ds_write_b32 v{vcb}, v11 offset:{FLAG}')
        if diag:
            A('    v_lshlrev_b32 v11, 16, v11')
            A('    v_add_u32 v11, 1, v11')
            A(f'    ds_add_u32 v{vcb}, v11 offset:{FLAG+4}')
        A(f'    s_cmp_lt_u32 s62, {DONE}')
        A('    s_cbranch_scc1 L_follow')
        A('    s_endpgm')
        if master:
            A('L_leader:')
            A('    s_cmp_eq_u32 s2, 0')
            A('    s_cbranch_scc1 L_master')
            A('    s_mov_b64 exec, 1')
            A('L_relay:')
            A(f'    s_sleep {lsleep}')
            A('    buffer_load_dword v9, v8, s[40:43], 0 offen sc1')
            A(f'    ds_read_b32 v10, v{vcb} offset:{PROG}')
            A('    s_waitcnt vmcnt(0) lgkmcnt(0)')
            A('    buffer_store_dword v9, v8, s[40:43], s61 offen')
            A(f'    v_add_u32 v11, {thg}, v10' if thg >= 0 else f'    v_subrev_u32 v11, {-thg}, v10')
            A('    v_readfirstlane_b32 s62, v10')
            A('    v_cmp_gt_i32 vcc, v9, v11')
            A('    s_nop 1')
            A('    v_cndmask_b32 v11, 0, 1, vcc')
            A(f'    ds_write_b32 v{vcb}, v11 offset:{FLAG}')
            if diag:
                A('    v_lshlrev_b32 v11, 16, v11')
                A('    v_add_u32 v11, 1, v11')
                A(f'    ds_add_u32 v{vcb}, v11 offset:{FLAG+4}')
            A(f'    s_cmp_lt_u32 s62, {DONE + 32}')
            A('    s_cbranch_scc1 L_relay')
            A('    s_endpgm')
            A('L_master:')
            A(f'    s_mov_b32 exec_lo, {(1 << mlanes) - 1:#x}')
            A('    s_mov_b32 exec_hi, 0')
            A('L_mloop:')
            A(f'    s_sleep {msleep}')
            A(f'    ds_read_b32 v10, v{vcb} offset:{PROG}')
            A('    s_waitcnt lgkmcnt(0)')
            A('    buffer_store_dword v10, v12, s[40:43], 0 offen sc1')
            A('    v_readfirstlane_b32 s62, v10')
            A('    v_bfe_u32 v11, v10, 4, 1')
            A(f'    ds_write_b32 v{vcb}, v11 offset:{FLAG}')
            A(f'    s_cmp_lt_u32 s62, {DONE + 32}')
            A('    s_cbranch_scc1 L_mloop')
        else:
            A('L_leader:')
            A(f'    s_sleep {lsleep}')
            A(f'    ds_read_b32 v10, v{vcb} offset:{PROG}')
            A('    s_waitcnt lgkmcnt(0)')
            A('    v_readfirstlane_b32 s62, v10')
            A('    s_mov_b64 exec, 1')
            if not relay:
                A('    buffer_store_dword v10, v8, s[40:43], s61 offen')
            if glob:
                if not relay:
                    A('    s_add_u32 s63, s63, 1')
                    A(f'    s_and_b32 s63, s63, {gper - 1}')
                    A('    s_cbranch_scc1 L_lnext')
                if gst != 'none': A(f'    buffer_store_dword v10, v8, s[40:43], s60 offen {gst}')
                A('    s_mov_b64 exec, -1')
                A('    v_mov_b32 v9, 0')
                A(f'    s_mov_b64 exec, {(1 << NL) - 1}')
                if gld != 'none': A(f'    buffer_load_dword v9, v12, s[40:43], 0 offen {gld}')
                A('    s_mov_b64 exec, -1')
                A('    s_waitcnt vmcnt(0)')
                for sh in (8, 4, 2, 1):
                    A(f'    v_add_u32_dpp v9, v9, v9 row_ror:{sh}{DPP}')
                    A('    s_nop 1')
                A(f'    v_lshrrev_b32 v9, {NL.bit_length()-1}, v9')
                A('    s_mov_b64 exec, 1')
                if relay:
                    A('    buffer_store_dword v9, v8, s[40:43], s61 offen')
                A(f'    v_add_u32 v11, {thg}, v10' if thg >= 0 else f'    v_subrev_u32 v11, {-thg}, v10')
                A('    v_cmp_gt_i32 vcc, v9, v11')
                A('    s_nop 1')
                A('    v_cndmask_b32 v11, 0, 1, vcc')
                A(f'    ds_write_b32 v{vcb}, v11 offset:{FLAG}')
                if diag:
                    A('    v_lshlrev_b32 v11, 16, v11')
                    A('    v_add_u32 v11, 1, v11')
                    A(f'    ds_add_u32 v{vcb}, v11 offset:{FLAG+4}')
            A('L_lnext:')
            A('    s_mov_b64 exec, -1')
            A(f'    s_cmp_lt_u32 s62, {DONE + 32}')
            A('    s_cbranch_scc1 L_leader')
    A('L_end:')
    A('    s_endpgm')
    A('.section .rodata,"a"')
    A('.p2align 6')
    A(f'.amdhsa_kernel {NAME}')
    A(f'  .amdhsa_next_free_vgpr {nv}')
    A('  .amdhsa_next_free_sgpr 88')
    A(f'  .amdhsa_accum_offset {(nv + 3) // 4 * 4}')
    A('  .amdhsa_group_segment_fixed_size 0')
    A('  .amdhsa_kernarg_size 48')
    A('  .amdhsa_user_sgpr_count 2')
    A('  .amdhsa_user_sgpr_kernarg_segment_ptr 1')
    A('  .amdhsa_system_sgpr_workgroup_id_x 1')
    A('  .amdhsa_float_denorm_mode_32 3')
    A('.end_amdhsa_kernel')
    return '\n'.join(L) + '\n'

if __name__ == '__main__':
    ap = argparse.ArgumentParser()
    ap.add_argument('out')
    for n, d in (('cap', 5), ('procap', 8), ('tail', 8), ('efrac', 8), ('rotbit', 0), ('hx', 0), ('th', 0), ('thg', 0), ('fsleep', 8), ('lsleep', 4), ('gsp', 4), ('gper', 4), ('msleep', 16), ('mlanes', 32), ('be', 8), ('bo', 8)):
        ap.add_argument('--' + n, type=int, default=d)
    ap.add_argument('--perm', default='12,13,15,16,17,18,14')
    ap.add_argument('--fpol', default='sc1')
    ap.add_argument('--gst', default='sc1')
    ap.add_argument('--gld', default='sc1')
    for n in ('half', 'diag', 'noctl', 'noglob', 'relay', 'pergroup', 'master', 'direct', 'median', 'touch'):
        ap.add_argument('--' + n, action='store_true')
    a = ap.parse_args()
    open(a.out, 'w').write(gen(a.cap, a.procap, a.tail, a.efrac, [int(x) for x in a.perm.split(',')], a.rotbit if a.rotbit >= 0 else None, a.hx, a.half,
        a.diag, not a.noctl, a.th, a.thg, not a.noglob, a.relay, a.fsleep, a.lsleep, a.fpol, 8, a.pergroup, a.gsp, a.gper, a.gst, a.gld, a.master, a.msleep, a.mlanes, a.direct, a.median, a.be, a.bo, a.touch))
```

```python
import argparse, struct

def f2u(x):
    return struct.unpack('<I', struct.pack('<f', x))[0]

HEADER = open('standalone__mha_softmax__sampling.s.ref').read().split('; Override launch')[0]
NAME = 'standalone__mha_softmax__sampling_kernel'

DOC = ''';
;   A "group" is 16 keys = four 1 KiB loads (lane = key row (lane/16) x 8 dims (lane%16)).
;   Prefetch: ring of 4 groups per wave; at most WIN loads per wave are kept in flight, which is
'''

def gen(win=5, prowin=8, tail=4, perm=(12, 13, 15, 16, 17, 18, 14), rotbit=0, hx=0, half=False,
        th=4, share=5, poll=32, fpol='sc0', diag=False):
    L = []
    A = L.append
    W, NBUF, G, GPH, STEP = 4, 4, 256, 32, 16384
    SCW = 2 * GPH * 256
    SC = W * SCW
    SL = W * 512 + 128
    MLO = W * 512
    CB = 2 * SL
    CNT, PROG, FLAG = CB, CB + 16, CB + 20
    lds = 81920 + 1024
    WS_DIAG = 8 << 20
    REG = 1 << 20
    DPP = ' row_mask:0xf bank_mask:0xf'
    vOff, vQo, vL8 = 1, 2, 3
    vacc, vmx, vl, vt, vw, vx, vmn, vp, vone = 8, 16, 17, 18, 22, 23, 24, 26, 27
    vtmp = 28
    vcb, vOut, vLds, vneg = 36, 37, 38, 39
    vq, vM, vfl, vsc, vml = 40, 48, 50, 52, 56
    vdat = vml + 8
    vbuf = vdat + 8
    def B(b, i): return vbuf + b * 16 + i * 4
    nv = vbuf + 64
    sKo, sCnt, sHead, sPh, sBs, sRot, sTl = 44, 45, 46, 52, 53, 54, 56
    perm = list(perm)
    assert sorted(perm) == list(range(12, 19)) and perm[1] == perm[0] + 1
    def U(u): return ((u & 1) << perm[2]) | ((u >> 1) << perm[3])
    A(HEADER.rstrip('\n'))
    A(f'; @launch grid=({G},1,1) block=({(W+1)*64},1,1) lds={lds}')
    A(DOC.replace('WIN', str(win)).rstrip('\n'))
    A('.amdgcn_target "amdgcn-amd-amdhsa--gfx950"')
    A('.text')
    A(f'.globl {NAME}')
    A('.p2align 8')
    A(f'.type {NAME},@function')
    A(f'{NAME}:')
    if diag: A('    s_memrealtime s[70:71]')
    A('    s_load_dwordx4 s[4:7], s[0:1], 0        ; q, k')
    A('    v_lshrrev_b32 v4, 6, v0')
    A('    v_and_b32 v5, 63, v0                    ; lane')
    A('    v_readfirstlane_b32 s3, v4')
    A(f'    v_lshlrev_b32 v{vOff}, 4, v5')
    A(f'    v_lshl_add_u32 v{vOff}, v4, {perm[0]}, v{vOff}')
    slow = [p for p in perm[4:] if p <= 14]
    if rotbit is not None and slow:
        A(f'    s_bfe_u32 s{sRot}, s2, {(1 << 16) | rotbit:#x}')
        A(f'    s_lshl_b32 s{sRot}, s{sRot}, {slow[-1]}')
    else:
        A(f'    s_mov_b32 s{sRot}, 0')
    A(f'    s_lshl_b32 s50, s2, {19 if half else 20}')
    A('    s_lshr_b32 s62, s2, 8')
    A('    s_cbranch_scc1 L_end')
    A('    s_mov_b32 s14, 0x8080000' if half else '    s_lshl_b32 s14, 1, 20')
    A('    s_mov_b32 s15, 0x00020000')
    A('    s_waitcnt lgkmcnt(0)')
    A('    s_add_u32 s12, s6, s50')
    A('    s_addc_u32 s13, s7, 0')
    A('    s_and_b32 s13, s13, 0xffff')
    A(f'    s_cmp_eq_u32 s3, {W}')
    A('    s_cbranch_scc1 L_control')
    cur = [0]; gate = [False]; ncw = [0]
    def ld(b, i, so):
        if cur[0]:
            k = ncw[0]; ncw[0] += 1
            if gate[0]: A(f'    s_cbranch_vccnz L_w{k}')
            A(f'    s_waitcnt vmcnt({cur[0]-1})')
            if gate[0]: A(f'L_w{k}:')
        A(f'    buffer_load_dwordx4 v[{B(b,i)}:{B(b,i)+3}], v{vOff}, s[12:15], s{so} offen offset:{i*1024} nt')
    for i in range(4): ld(0, i, sRot)
    A(f'    s_add_u32 s{sPh}, s{sRot}, {U(1)}')
    for i in range(4): ld(1, i, sPh)
    A('    s_load_dwordx4 s[8:11], s[0:1], 16      ; v, out')
    if diag: A('    s_load_dwordx2 s[38:39], s[0:1], 40     ; ws')
    A(f'    v_and_b32 v{vQo}, 15, v0')
    A(f'    v_lshlrev_b32 v{vQo}, 4, v{vQo}                 ; (lane%16)*16')
    A(f'    s_lshl_b32 s51, s2, {8 if half else 9}')
    A(f'    s_mov_b32 s22, {0x10100 if half else 512}')
    A('    s_mov_b32 s23, 0x00020000')
    A(f'    s_mov_b32 s55, {0x10000 if half else 256}')
    A('    s_add_u32 s20, s4, s51')
    A('    s_addc_u32 s21, s5, 0')
    A('    s_and_b32 s21, s21, 0xffff')
    A(f'    buffer_load_dwordx4 v[{vq}:{vq+3}], v{vQo}, s[20:23], 0 offen')
    A(f'    buffer_load_dwordx4 v[{vq+4}:{vq+7}], v{vQo}, s[20:23], s55 offen')
    c = (128 ** -0.5) * 1.4426950408889634
    A(f'    s_mov_b32 s33, 0x{f2u(c):08x}               ; c = 128^-0.5 * log2(e)')
    A('    s_mov_b32 s34, 0xffff0000')
    A(f'    v_lshlrev_b32 v{vL8}, 3, v5                 ; lane*8')
    A('    v_lshrrev_b32 v6, 4, v5')
    A(f'    v_lshl_add_u32 v{vOut}, v6, 2, v{vQo}           ; out byte offset 16*(lane%16) + 4*(lane/16)')
    A(f'    v_lshlrev_b32 v{vLds}, 2, v5')
    A(f'    v_lshl_add_u32 v{vLds}, v4, {SCW.bit_length()-1}, v{vLds}')
    A(f'    v_mov_b32 v{vone}, 1')
    A(f'    v_mov_b32 v{vcb}, {SC}')
    A(f'    v_mov_b32 v{vmx}, 0xff800000')
    A(f'    s_mov_b32 s{sHead}, 0')
    A(f'    s_mov_b32 s{sCnt}, {GPH // NBUF}')
    A('    s_waitcnt lgkmcnt(0)')
    A('    s_add_u32 s16, s8, s50')
    A('    s_addc_u32 s17, s9, 0')
    A('    s_and_b32 s17, s17, 0xffff')
    A('    s_add_u32 s24, s10, s51                 ; s[24:27]: out')
    A('    s_addc_u32 s25, s11, 0')
    A('    s_and_b32 s25, s25, 0xffff')
    A(f'    s_mov_b32 s26, {0x10100 if half else 512}')
    A('    s_mov_b32 s27, 0x00020000')
    if diag:
        A('    s_mov_b32 s28, s38')
        A('    s_and_b32 s29, s39, 0xffff')
        A(f'    s_mov_b32 s30, {WS_DIAG + 65536}')
        A('    s_mov_b32 s31, 0x00020000')
    cur[0] = prowin
    for b in (2, 3):
        A(f'    s_add_u32 s{sPh}, s{sRot}, {U(b)}')
        for i in range(4): ld(b, i, sPh)
    A(f'    s_mov_b32 s{sKo}, {NBUF * STEP}')
    A('    s_barrier')
    A('    s_waitcnt vmcnt(8)                      ; q landed')
    cur[0] = win; gate[0] = True
    def itbase():
        A(f'    s_and_b32 s{sBs}, s{sKo}, 0x180000')
        if half: A(f'    s_lshl_b32 s{sBs}, s{sBs}, 8')
        for k in range(3):
            A(f'    s_bfe_u32 s62, s{sKo}, {(1 << 16) | (16 + k):#x}')
            A(f'    s_lshl_b32 s62, s62, {perm[4+k]}')
            A(f'    s_or_b32 s{sBs}, s{sBs}, s62')
        A(f'    s_xor_b32 s{sBs}, s{sBs}, s{sRot}')
        if hx:
            A(f'    s_bfe_u32 s62, s{sKo}, 0x10013')
            A(f'    s_lshl_b32 s62, s62, {hx}')
            A(f'    s_xor_b32 s{sBs}, s{sBs}, s62')
    def prog():
        A('    s_mov_b64 exec, 1')
        A(f'    ds_add_u32 v{vcb}, v{vone} offset:{PROG}      ; progress')
        A('    s_mov_b64 exec, -1')
    A('L_kloop:')
    A(f'    s_cmp_lt_u32 s{sKo}, {REG}')
    A('    s_cbranch_scc1 L_kgo')
    A('    s_mov_b32 s12, s16')
    A('    s_mov_b32 s13, s17')
    A(f'    s_mov_b32 s{sKo}, 0')
    A('L_kgo:')
    itbase()
    for b in range(NBUF):
        prog()
        rd = b % 2 == 0
        if rd: A(f'    ds_read_b32 v{vfl}, v{vcb} offset:{FLAG}')
        A(f'    s_add_u32 s{sPh}, s{sBs}, {U(b)}')
        A('    s_waitcnt vmcnt(12)')
        for i in range(4):
            A(f'    v_dot2_f32_bf16 v{vt+i}, v{B(b,i)}, v{vq}, 0')
        for w in range(1, 4):
            for i in range(4):
                A(f'    v_dot2_f32_bf16 v{vt+i}, v{B(b,i)+w}, v{vq+w}, v{vt+i}')
        if rd:
            A('    s_waitcnt lgkmcnt(0)')
            A(f'    v_cmp_ne_u32 vcc, 0, v{vfl}')
        ld(b, 0, sPh)
        A(f'    v_add_f32_dpp v{vt}, v{vt}, v{vt} row_ror:8 row_mask:0xf bank_mask:0x3')
        A(f'    v_add_f32_dpp v{vt+2}, v{vt+2}, v{vt+2} row_ror:8 row_mask:0xf bank_mask:0x3')
        A('    s_nop 0')
        A(f'    v_add_f32_dpp v{vt}, v{vt+1}, v{vt+1} row_ror:8 row_mask:0xf bank_mask:0xc')
        A(f'    v_add_f32_dpp v{vt+2}, v{vt+3}, v{vt+3} row_ror:8 row_mask:0xf bank_mask:0xc')
        ld(b, 1, sPh)
        A(f'    v_add_f32_dpp v{vw}, v{vt}, v{vt} row_ror:12 row_mask:0xf bank_mask:0x5')
        A('    s_nop 1')
        A(f'    v_add_f32_dpp v{vw}, v{vt+2}, v{vt+2} row_ror:4 row_mask:0xf bank_mask:0xa')
        ld(b, 2, sPh)
        A(f'    v_add_f32_dpp v{vw}, v{vw}, v{vw} quad_perm:[1,0,3,2]{DPP}')
        ld(b, 3, sPh)
        A(f'    v_add_f32_dpp v{vw}, v{vw}, v{vw} quad_perm:[2,3,0,1]{DPP}')
        A(f'    s_add_u32 s{sKo}, s{sKo}, {STEP}')
        A(f'    ds_write_b32 v{vLds}, v{vw} offset:{256*b}')
        A(f'    v_max_f32 v{vmx}, v{vmx}, v{vw}')
    A(f'    v_add_u32 v{vLds}, {256*NBUF}, v{vLds}')
    A(f'    s_sub_u32 s{sCnt}, s{sCnt}, 1')
    A(f'    s_cmp_lg_u32 s{sCnt}, 0')
    A('    s_cbranch_scc1 L_kloop')
    A(f'    v_max_f32_dpp v{vmx}, v{vmx}, v{vmx} row_ror:4{DPP}')
    A(f'    s_mov_b32 s{sCnt}, {GPH // NBUF}')
    A('    s_nop 0')
    A(f'    v_max_f32_dpp v{vmx}, v{vmx}, v{vmx} row_ror:8{DPP}')
    A(f'    v_mov_b32 v{vx}, v{vmx}')
    A('    s_nop 1')
    A(f'    v_permlane32_swap_b32 v{vx}, v{vmx}')
    A('    s_nop 1')
    A(f'    v_max_f32 v{vmx}, v{vx}, v{vmx}')
    A(f'    v_mov_b32 v{vx}, v{vmx}')
    A('    s_nop 1')
    A(f'    v_permlane16_swap_b32 v{vx}, v{vmx}')
    A('    s_nop 1')
    A(f'    v_max_f32 v{vmx}, v{vx}, v{vmx}')
    A(f'    v_mul_f32 v{vM+1}, s33, v{vmx}')
    A(f'    s_cmp_lg_u32 s{sHead}, 0')
    A('    s_cbranch_scc1 L_vstart')
    A(f'    s_mov_b32 s{sHead}, 1')
    A(f'    v_mov_b32 v{vM}, v{vM+1}')
    A(f'    v_mov_b32 v{vmx}, 0xff800000')
    for e in range(4):
        A(f'    v_mov_b32 v{vq+e}, v{vq+4+e}')
    A('    s_branch L_kloop')
    A('; ---------------- phase 2: p.V')
    A('L_vstart:')
    A(f'    v_subrev_u32 v{vLds}, {SCW}, v{vLds}')
    A(f'    s_mov_b32 s{sHead}, 0')
    A(f'    ds_read_b32 v{vsc}, v{vLds}')
    A('L_vhead:')
    A(f'    v_sub_f32 v{vneg}, 0, v{vM}')
    for e in range(8):
        A(f'    v_mov_b32 v{vacc+e}, 0')
    A(f'    v_mov_b32 v{vl}, 0')
    A('L_vloop:')
    A(f'    s_cmp_ge_u32 s{sKo}, {REG - tail * STEP}')
    A(f'    s_cselect_b32 s{sTl}, -1, 0')
    itbase()
    src_lane = [0, 8, 4, 12]
    for b in range(NBUF):
        A('    s_waitcnt lgkmcnt(0)')
        A(f'    v_cmp_ne_u32 vcc, s{sTl}, v{vfl}')
        A(f'    v_fma_f32 v{vp}, v{vsc+b}, s33, v{vneg}')
        prog()
        A(f'    ds_read_b32 v{vsc + (b+1) % NBUF}, v{vLds} offset:{256*(b+1)}')
        if b % 2 == 0: A(f'    ds_read_b32 v{vfl}, v{vcb} offset:{FLAG}')
        A(f'    v_exp_f32 v{vp}, v{vp}')
        A(f'    s_add_u32 s{sPh}, s{sBs}, {U(b)}')
        for i in range(4):
            A(f'    s_waitcnt vmcnt({4*NBUF-1})')
            for w in range(4):
                A(f'    v_lshlrev_b32 v{vtmp+2*w}, 16, v{B(b,i)+w}')
                A(f'    v_and_b32 v{vtmp+2*w+1}, s34, v{B(b,i)+w}')
            ld(b, i, sPh)
            for e in range(8):
                A(f'    v_fmac_f32_dpp v{vacc+e}, v{vp}, v{vtmp+e} row_newbcast:{src_lane[i]}{DPP}')
        A(f'    v_add_f32 v{vl}, v{vl}, v{vp}')
        A(f'    s_add_u32 s{sKo}, s{sKo}, {STEP}')
    A(f'    v_add_u32 v{vLds}, {256*NBUF}, v{vLds}')
    A(f'    s_sub_u32 s{sCnt}, s{sCnt}, 1')
    A(f'    s_cmp_lg_u32 s{sCnt}, 0')
    A('    s_cbranch_scc1 L_vloop')
    A(f'    s_mul_i32 s63, s{sHead}, {SL}')
    A(f'    s_add_u32 s63, s63, {SC}')
    A(f'    v_add_f32_dpp v{vl}, v{vl}, v{vl} row_ror:4{DPP}')
    for k in range(4):
        A(f'    v_permlane32_swap_b32 v{vacc+k}, v{vacc+k+4}')
    A(f'    v_add_f32_dpp v{vl}, v{vl}, v{vl} row_ror:8{DPP}')
    A('    s_lshl_b32 s64, s3, 9')
    A('    s_add_u32 s64, s64, s63')
    for k in range(4):
        A(f'    v_add_f32 v{vacc+k}, v{vacc+k}, v{vacc+k+4}')
    A(f'    v_mov_b32 v{vx}, v{vl}')
    A(f'    v_add_u32 v4, s64, v{vL8}')
    A('    s_lshl_b32 s64, s3, 3')
    A(f'    v_permlane16_swap_b32 v{vacc}, v{vacc+2}')
    A(f'    v_permlane16_swap_b32 v{vacc+1}, v{vacc+3}')
    A(f'    v_permlane32_swap_b32 v{vl}, v{vx}')
    A('    s_add_u32 s64, s64, s63')
    A('    v_mov_b32 v5, s64')
    A(f'    v_add_f32 v{vacc}, v{vacc}, v{vacc+2}')
    A(f'    v_add_f32 v{vacc+1}, v{vacc+1}, v{vacc+3}')
    A(f'    v_add_f32 v{vl}, v{vl}, v{vx}')
    A(f'    ds_write_b64 v4, v[{vacc}:{vacc+1}]             ; dims 8*(lane%16) + 2*(lane/16), +1')
    A(f'    v_mov_b32 v{vx}, v{vl}')
    A(f'    v_mov_b32 v{vmn}, v{vM}')
    A(f'    s_lshl_b32 s65, s{sHead}, 2')
    A(f'    v_permlane16_swap_b32 v{vl}, v{vx}')
    A(f'    v_add_u32 v6, s65, v{vcb}')
    A('    s_nop 0')
    A(f'    v_add_f32 v{vmn+1}, v{vl}, v{vx}')
    A(f'    ds_write_b64 v5, v[{vmn}:{vmn+1}] offset:{MLO}')
    A('    s_waitcnt lgkmcnt(0)')
    A('    s_mov_b64 exec, 1')
    A(f'    ds_add_rtn_u32 v7, v6, v{vone} offset:{CNT}')
    A('    s_mov_b64 exec, -1')
    A(f'    v_add_u32 v4, s63, v{vL8}')
    A('    v_mov_b32 v5, s63')
    A('    s_waitcnt lgkmcnt(0)')
    A('    v_readfirstlane_b32 s66, v7')
    A(f'    s_cmp_lg_u32 s66, {W-1}')
    A('    s_cbranch_scc1 L_head_ret')
    for e2 in range(W // 2):
        A(f'    ds_read_b128 v[{vml+4*e2}:{vml+4*e2+3}], v5 offset:{MLO+16*e2}')
    for e in range(W):
        A(f'    ds_read_b64 v[{vdat+2*e}:{vdat+2*e+1}], v4 offset:{512*e}')
    A(f'    s_waitcnt lgkmcnt({W})')
    A(f'    v_max_f32 v{vmn}, v{vml}, v{vml+2}')
    A(f'    v_max3_f32 v{vmn}, v{vmn}, v{vml+4}, v{vml+6}')
    for e in range(W):
        A(f'    v_sub_f32 v{vml+2*e}, v{vml+2*e}, v{vmn}')
    for e in range(W):
        A(f'    v_exp_f32 v{vml+2*e}, v{vml+2*e}')
    A(f'    s_mul_i32 s64, s{sHead}, s55')
    A(f'    v_mul_f32 v{vl}, v{vml}, v{vml+1}')
    for e in range(1, W):
        A(f'    v_fmac_f32 v{vl}, v{vml+2*e}, v{vml+2*e+1}')
    A(f'    v_rcp_f32 v{vx}, v{vl}')
    A('    s_waitcnt lgkmcnt(0)')
    A(f'    v_mul_f32 v{vt}, v{vml}, v{vdat}')
    A(f'    v_mul_f32 v{vt+1}, v{vml}, v{vdat+1}')
    for e in range(1, W):
        A(f'    v_fmac_f32 v{vt}, v{vml+2*e}, v{vdat+2*e}')
        A(f'    v_fmac_f32 v{vt+1}, v{vml+2*e}, v{vdat+2*e+1}')
    A(f'    v_mul_f32 v{vt}, v{vt}, v{vx}')
    A(f'    v_mul_f32 v{vt+1}, v{vt+1}, v{vx}')
    A(f'    v_cvt_pk_bf16_f32 v7, v{vt}, v{vt+1}')
    A(f'    buffer_store_dword v7, v{vOut}, s[24:27], s64 offen')
    if diag:
        A('    s_memrealtime s[68:69]')
        A('    s_getreg_b32 s62, hwreg(HW_REG_XCC_ID)')
        A(f'    ds_read_b32 v{vml+3}, v{vcb} offset:{FLAG+4}')
        A('    s_waitcnt lgkmcnt(0)')
        A('    s_or_b32 s62, s62, 0x100')
        A(f'    v_mov_b32 v{vml}, s70')
        A(f'    v_mov_b32 v{vml+1}, s62')
        A(f'    v_mov_b32 v{vml+2}, s68')
        A('    v_mov_b32 v6, 0')
        A('    s_lshl_b32 s64, s2, 5')
        A(f'    s_lshl_b32 s65, s{sHead}, 4')
        A('    s_add_u32 s64, s64, s65')
        A(f'    s_add_u32 s64, s64, {WS_DIAG}')
        A('    s_mov_b64 exec, 1')
        A(f'    buffer_store_dwordx4 v[{vml}:{vml+3}], v6, s[28:31], s64 offen')
        A('    s_mov_b64 exec, -1')
    A('L_head_ret:')
    A(f'    s_cmp_lg_u32 s{sHead}, 0')
    A('    s_cbranch_scc1 L_end')
    A(f'    s_mov_b32 s{sHead}, 1')
    A(f'    s_mov_b32 s{sCnt}, {GPH // NBUF}')
    A(f'    v_mov_b32 v{vM}, v{vM+1}')
    A('    s_branch L_vhead')
    A('L_control:')
    A('    s_load_dwordx2 s[36:37], s[0:1], 32     ; debug')
    A(f'    v_mov_b32 v{vcb}, {SC}')
    for r in (8, 9, 10, 11): A(f'    v_mov_b32 v{r}, 0')
    A(f'    ds_write_b128 v{vcb}, v[8:11] offset:{CNT}')
    A(f'    ds_write_b128 v{vcb}, v[8:11] offset:{PROG}')
    A('    v_lshlrev_b32 v12, 2, v5')
    A('    s_lshr_b32 s60, s2, 3')
    A('    s_lshl_b32 s60, s60, 2')
    A('    s_mov_b32 s42, 128')
    A('    s_mov_b32 s43, 0x00020000')
    A('    s_waitcnt lgkmcnt(0)')
    A('    s_mov_b32 s40, s36')
    A('    s_and_b32 s41, s37, 0xffff')
    A('    s_barrier')
    A('L_poll:')
    A(f'    s_sleep {poll}')
    A(f'    ds_read_b32 v10, v{vcb} offset:{PROG}')
    A(f'    buffer_load_dword v9, v12, s[40:43], 0 offen {fpol}')
    A('    s_waitcnt lgkmcnt(0)')
    A('    s_mov_b64 exec, 1')
    A('    buffer_store_dword v10, v8, s[40:43], s60 offen')
    A('    s_mov_b64 exec, -1')
    A(f'    v_add_u32 v11, {th}, v10')
    A('    v_readfirstlane_b32 s62, v10')
    A('    s_waitcnt vmcnt(1)')
    A('    v_cmp_gt_u32 vcc, v9, v11')
    A('    v_cmp_ne_u32 s[64:65], 0, v9')
    A('    s_bcnt1_i32_b64 s66, vcc')
    A('    s_bcnt1_i32_b64 s67, s[64:65]')
    A('    s_lshl_b32 s66, s66, 4')
    A(f'    s_mul_i32 s67, s67, {share}')
    A('    s_cmp_gt_u32 s66, s67')
    A('    s_cselect_b32 s66, 1, 0')
    A('    v_mov_b32 v11, s66')
    A(f'    ds_write_b32 v{vcb}, v11 offset:{FLAG}')
    if diag:
        A('    v_lshlrev_b32 v11, 16, v11')
        A('    v_add_u32 v11, 1, v11')
        A('    s_mov_b64 exec, 1')
        A(f'    ds_add_u32 v{vcb}, v11 offset:{FLAG+4}')
        A('    s_mov_b64 exec, -1')
    A('    s_cmp_lt_u32 s62, 472')
    A('    s_cbranch_scc1 L_poll')
    A('L_end:')
    A('    s_endpgm')
    A('.section .rodata,"a"')
    A('.p2align 6')
    A(f'.amdhsa_kernel {NAME}')
    A(f'  .amdhsa_next_free_vgpr {nv}')
    A('  .amdhsa_next_free_sgpr 80')
    A(f'  .amdhsa_accum_offset {(nv + 3) // 4 * 4}')
    A('  .amdhsa_group_segment_fixed_size 0')
    A('  .amdhsa_kernarg_size 48')
    A('  .amdhsa_user_sgpr_count 2')
    A('  .amdhsa_user_sgpr_kernarg_segment_ptr 1')
    A('  .amdhsa_system_sgpr_workgroup_id_x 1')
    A('  .amdhsa_float_denorm_mode_32 3')
    A('.end_amdhsa_kernel')
    return '\n'.join(L) + '\n'

if __name__ == '__main__':
    ap = argparse.ArgumentParser()
    ap.add_argument('out')
    for n, d in (('win', 5), ('prowin', 8), ('tail', 4), ('rotbit', 0), ('hx', 0), ('th', 4), ('share', 5), ('poll', 32)):
        ap.add_argument('--' + n, type=int, default=d)
    ap.add_argument('--perm', default='12,13,15,16,17,18,14')
    ap.add_argument('--fpol', default='sc0')
    for n in ('half', 'diag'):
        ap.add_argument('--' + n, action='store_true')
    a = ap.parse_args()
    open(a.out, 'w').write(gen(a.win, a.prowin, a.tail, [int(x) for x in a.perm.split(',')], a.rotbit if a.rotbit >= 0 else None,
                               a.hx, a.half, a.th, a.share, a.poll, a.fpol, a.diag))
```

```python
import argparse, struct

def f2u(x):
    return struct.unpack('<I', struct.pack('<f', x))[0]

HEADER = open('standalone__mha_softmax__sampling.s.ref').read().split('; Override launch')[0]
NAME = 'standalone__mha_softmax__sampling_kernel'

DOC = ''';
;   A "group" is 16 keys = four 1 KiB loads (lane = key row (lane/16) x 8 dims (lane%16)).
;   Prefetch: ring of 4 groups per wave; at most WIN loads per wave are kept in flight, which is
'''

def gen(win=5, prowin=8, tail=4, perm=(12, 13, 15, 16, 17, 18, 14), rotbit=0, hx=0, half=False,
        th=4, share=5, poll=32, fpol='sc0', diag=False, up=(), dn=(), hiwin=0, p2=0, th2=0, share2=5, poll2=8, pend=472, taile=None, eper=0, oper=0, free=0, mfma=False):
    L = []
    A = L.append
    W, NBUF, G, GPH, STEP = 4, 4, 256, 32, 16384
    SCW = 2 * GPH * 256
    SC = W * SCW
    SL = W * 512 + 128
    MLO = W * 512
    CB = 2 * SL
    CNT, PROG, FLAG = CB, CB + 16, CB + 20
    lds = 81920 + 1024
    WS_DIAG = 8 << 20
    REG = 1 << 20
    DPP = ' row_mask:0xf bank_mask:0xf'
    vOff, vQo, vL8 = 1, 2, 3
    vacc, vmx, vl, vt, vw, vx, vmn, vp, vone = 8, 16, 17, 18, 22, 23, 24, 26, 27
    vtmp = 28
    vcb, vOut, vLds, vneg = 36, 37, 38, 39
    vq, vM, vfl, vsc, vml = 40, 48, 50, 52, 56
    vmask, vAo, vH = 12, 51, 25
    vdat = vml + 8
    vbuf = vdat + 8
    def B(b, i): return vbuf + b * 16 + i * 4
    nv = vbuf + 64
    sKo, sCnt, sHead, sPh, sBs, sRot, sTl = 44, 45, 46, 52, 53, 54, 56
    perm = list(perm)
    assert sorted(perm) == list(range(12, 19)) and perm[1] == perm[0] + 1
    if eper: up = list(range(16))
    def U(u): return ((u & 1) << perm[2]) | ((u >> 1) << perm[3])
    A(HEADER.rstrip('\n'))
    A(f'; @launch grid=({G},1,1) block=({(W+1)*64},1,1) lds={lds}')
    A(DOC.replace('WIN', str(win)).rstrip('\n'))
    A('.amdgcn_target "amdgcn-amd-amdhsa--gfx950"')
    A('.text')
    A(f'.globl {NAME}')
    A('.p2align 8')
    A(f'.type {NAME},@function')
    A(f'{NAME}:')
    if diag: A('    s_memrealtime s[70:71]')
    A('    s_load_dwordx4 s[4:7], s[0:1], 0        ; q, k')
    A('    v_lshrrev_b32 v4, 6, v0')
    A('    v_and_b32 v5, 63, v0                    ; lane')
    A('    v_readfirstlane_b32 s3, v4')
    A(f'    v_lshlrev_b32 v{vOff}, 4, v5')
    A(f'    v_lshl_add_u32 v{vOff}, v4, {perm[0]}, v{vOff}')
    slow = [p for p in perm[4:] if p <= 14]
    if rotbit is not None and slow:
        A(f'    s_bfe_u32 s{sRot}, s2, {(1 << 16) | rotbit:#x}')
        A(f'    s_lshl_b32 s{sRot}, s{sRot}, {slow[-1]}')
    else:
        A(f'    s_mov_b32 s{sRot}, 0')
    A(f'    s_lshl_b32 s50, s2, {19 if half else 20}')
    A('    s_lshr_b32 s62, s2, 8')
    A('    s_cbranch_scc1 L_end')
    A('    s_mov_b32 s14, 0x8080000' if half else '    s_lshl_b32 s14, 1, 20')
    A('    s_mov_b32 s15, 0x00020000')
    A('    s_waitcnt lgkmcnt(0)')
    A('    s_add_u32 s12, s6, s50')
    A('    s_addc_u32 s13, s7, 0')
    A('    s_and_b32 s13, s13, 0xffff')
    A(f'    s_cmp_eq_u32 s3, {W}')
    A('    s_cbranch_scc1 L_control')
    cur = [0]; gate = [False]; ncw = [0]; inv = [False]
    def ld(b, i, so):
        if cur[0]:
            k = ncw[0]; ncw[0] += 1
            site = b * 4 + i
            if gate[0] and inv[0] and free and hiwin:
                A(f'    s_cbranch_vccz L_n{k}')
                A(f'    s_cmp_ge_u32 s{sKo}, s59')
                A(f'    s_cbranch_scc1 L_w{k}')
                A(f'    s_waitcnt vmcnt({hiwin-1})')
                A(f'    s_branch L_w{k}')
                A(f'L_n{k}:')
                A(f'    s_waitcnt vmcnt({cur[0]-1})')
                A(f'L_w{k}:')
                A(f'    buffer_load_dwordx4 v[{B(b,i)}:{B(b,i)+3}], v{vOff}, s[12:15], s{so} offen offset:{i*1024} nt')
                return
            if gate[0]: A(f'    s_cbranch_vccnz L_w{k}')
            if gate[0] and site in up:
                A(f'    s_waitcnt vmcnt({cur[0]})')
                A('    s_cmp_eq_u32 s57, 0')
                A(f'    s_cbranch_scc1 L_w{k}')
            A(f'    s_waitcnt vmcnt({cur[0]-1})')
            if gate[0] and site in dn:
                A('    s_cmp_eq_u32 s57, 0')
                A(f'    s_cbranch_scc1 L_w{k}')
                A(f'    s_waitcnt vmcnt({cur[0]-2})')
            if gate[0]: A(f'L_w{k}:')
            if gate[0] and hiwin: A(f'    s_waitcnt vmcnt({hiwin-1})')
        A(f'    buffer_load_dwordx4 v[{B(b,i)}:{B(b,i)+3}], v{vOff}, s[12:15], s{so} offen offset:{i*1024} nt')
    for i in range(4): ld(0, i, sRot)
    A(f'    s_add_u32 s{sPh}, s{sRot}, {U(1)}')
    for i in range(4): ld(1, i, sPh)
    A('    s_load_dwordx4 s[8:11], s[0:1], 16      ; v, out')
    if diag: A('    s_load_dwordx2 s[38:39], s[0:1], 40     ; ws')
    A(f'    v_and_b32 v{vQo}, 15, v0')
    A(f'    v_lshlrev_b32 v{vQo}, 4, v{vQo}                 ; (lane%16)*16')
    A(f'    s_lshl_b32 s51, s2, {8 if half else 9}')
    A(f'    s_mov_b32 s22, {0x10100 if half else 512}')
    A('    s_mov_b32 s23, 0x00020000')
    A(f'    s_mov_b32 s55, {0x10000 if half else 256}')
    A('    s_add_u32 s20, s4, s51')
    A('    s_addc_u32 s21, s5, 0')
    A('    s_and_b32 s21, s21, 0xffff')
    A(f'    buffer_load_dwordx4 v[{vq}:{vq+3}], v{vQo}, s[20:23], 0 offen')
    A(f'    buffer_load_dwordx4 v[{vq+4}:{vq+7}], v{vQo}, s[20:23], s55 offen')
    c = (128 ** -0.5) * 1.4426950408889634
    A(f'    s_mov_b32 s33, 0x{f2u(c):08x}               ; c = 128^-0.5 * log2(e)')
    A('    s_mov_b32 s34, 0xffff0000')
    if up or dn:
        A('    s_getreg_b32 s57, hwreg(HW_REG_XCC_ID)')
        A('    s_and_b32 s57, s57, 1')
        if eper:
            A(f'    s_cselect_b32 s61, {((oper - 1) if oper else 0x7fff) << 16}, {(eper - 1) << 16}' if False else f'    s_mov_b32 s61, {(eper - 1) << 16}')
            A(f'    s_mov_b32 s60, {(((oper - 1) << 16) if oper else 0)}')
            A('    s_cmp_lg_u32 s57, 0')
            A('    s_cselect_b32 s61, s60, s61')
            A(f'    s_cselect_b32 s60, {0 if oper else 1}, 0')
    A(f'    v_lshlrev_b32 v{vL8}, 3, v5                 ; lane*8')
    if mfma:
        A('    v_and_b32 v6, 1, v0')
        A('    v_lshlrev_b32 v6, 4, v6')
        A('    v_mov_b32 v7, 0xffff')
        A('    v_lshlrev_b32 v7, v6, v7')
        A('    v_bfe_u32 v6, v0, 1, 3')
        for w in range(4):
            A(f'    v_cmp_eq_u32 vcc, {w}, v6')
            A('    s_nop 1')
            A(f'    v_cndmask_b32 v{vmask+w}, 0, v7, vcc')
        A('    v_lshrrev_b32 v6, 4, v5')
        A(f'    v_lshlrev_b32 v6, 4, v6')
        A(f'    v_lshl_add_u32 v{vAo}, v{vQo}, 1, v6           ; LDS offset of this lane\'s 4 dims: 32*(lane%16) + 16*(lane/16)')
        A(f'    v_lshlrev_b32 v{vOut}, 2, v5')
    else:
        A('    v_lshrrev_b32 v6, 4, v5')
        A(f'    v_lshl_add_u32 v{vOut}, v6, 2, v{vQo}           ; out byte offset 16*(lane%16) + 4*(lane/16)')
    A(f'    v_lshlrev_b32 v{vLds}, 2, v5')
    A(f'    v_lshl_add_u32 v{vLds}, v4, {SCW.bit_length()-1}, v{vLds}')
    A(f'    v_mov_b32 v{vone}, 1')
    A(f'    v_mov_b32 v{vcb}, {SC}')
    A(f'    v_mov_b32 v{vmx}, 0xff800000')
    A(f'    s_mov_b32 s{sHead}, 0')
    A(f'    s_mov_b32 s{sCnt}, {GPH // NBUF}')
    A('    s_waitcnt lgkmcnt(0)')
    A('    s_add_u32 s16, s8, s50')
    A('    s_addc_u32 s17, s9, 0')
    A('    s_and_b32 s17, s17, 0xffff')
    A('    s_add_u32 s24, s10, s51                 ; s[24:27]: out')
    A('    s_addc_u32 s25, s11, 0')
    A('    s_and_b32 s25, s25, 0xffff')
    A(f'    s_mov_b32 s26, {0x10100 if half else 512}')
    A('    s_mov_b32 s27, 0x00020000')
    if diag:
        A('    s_mov_b32 s28, s38')
        A('    s_and_b32 s29, s39, 0xffff')
        A(f'    s_mov_b32 s30, {WS_DIAG + 65536}')
        A('    s_mov_b32 s31, 0x00020000')
    cur[0] = prowin
    for b in (2, 3):
        A(f'    s_add_u32 s{sPh}, s{sRot}, {U(b)}')
        for i in range(4): ld(b, i, sPh)
    A(f'    s_mov_b32 s{sKo}, {NBUF * STEP}')
    A('    s_barrier')
    A('    s_waitcnt vmcnt(8)                      ; q landed')
    cur[0] = win; gate[0] = True
    def itbase():
        if eper:
            A(f'    s_and_b32 s57, s{sKo}, s61')
            A('    s_or_b32 s57, s57, s60')
        A(f'    s_and_b32 s{sBs}, s{sKo}, 0x180000')
        if half: A(f'    s_lshl_b32 s{sBs}, s{sBs}, 8')
        for k in range(3):
            A(f'    s_bfe_u32 s62, s{sKo}, {(1 << 16) | (16 + k):#x}')
            A(f'    s_lshl_b32 s62, s62, {perm[4+k]}')
            A(f'    s_or_b32 s{sBs}, s{sBs}, s62')
        A(f'    s_xor_b32 s{sBs}, s{sBs}, s{sRot}')
        if hx:
            A(f'    s_bfe_u32 s62, s{sKo}, 0x10013')
            A(f'    s_lshl_b32 s62, s62, {hx}')
            A(f'    s_xor_b32 s{sBs}, s{sBs}, s62')
    def prog():
        A('    s_mov_b64 exec, 1')
        A(f'    ds_add_u32 v{vcb}, v{vone} offset:{PROG}      ; progress')
        A('    s_mov_b64 exec, -1')
    A('L_kloop:')
    A(f'    s_cmp_lt_u32 s{sKo}, {REG}')
    A('    s_cbranch_scc1 L_kgo')
    A('    s_mov_b32 s12, s16')
    A('    s_mov_b32 s13, s17')
    A(f'    s_mov_b32 s{sKo}, 0')
    A('L_kgo:')
    itbase()
    for b in range(NBUF):
        prog()
        rd = b % 2 == 0
        if rd: A(f'    ds_read_b32 v{vfl}, v{vcb} offset:{FLAG}')
        A(f'    s_add_u32 s{sPh}, s{sBs}, {U(b)}')
        A('    s_waitcnt vmcnt(12)')
        for i in range(4):
            A(f'    v_dot2_f32_bf16 v{vt+i}, v{B(b,i)}, v{vq}, 0')
        for w in range(1, 4):
            for i in range(4):
                A(f'    v_dot2_f32_bf16 v{vt+i}, v{B(b,i)+w}, v{vq+w}, v{vt+i}')
        if rd:
            A('    s_waitcnt lgkmcnt(0)')
            A(f'    v_cmp_ne_u32 vcc, 0, v{vfl}')
        ld(b, 0, sPh)
        A(f'    v_add_f32_dpp v{vt}, v{vt}, v{vt} row_ror:8 row_mask:0xf bank_mask:0x3')
        A(f'    v_add_f32_dpp v{vt+2}, v{vt+2}, v{vt+2} row_ror:8 row_mask:0xf bank_mask:0x3')
        A('    s_nop 0')
        A(f'    v_add_f32_dpp v{vt}, v{vt+1}, v{vt+1} row_ror:8 row_mask:0xf bank_mask:0xc')
        A(f'    v_add_f32_dpp v{vt+2}, v{vt+3}, v{vt+3} row_ror:8 row_mask:0xf bank_mask:0xc')
        ld(b, 1, sPh)
        A(f'    v_add_f32_dpp v{vw}, v{vt}, v{vt} row_ror:12 row_mask:0xf bank_mask:0x5')
        A('    s_nop 1')
        A(f'    v_add_f32_dpp v{vw}, v{vt+2}, v{vt+2} row_ror:4 row_mask:0xf bank_mask:0xa')
        ld(b, 2, sPh)
        A(f'    v_add_f32_dpp v{vw}, v{vw}, v{vw} quad_perm:[1,0,3,2]{DPP}')
        ld(b, 3, sPh)
        A(f'    v_add_f32_dpp v{vw}, v{vw}, v{vw} quad_perm:[2,3,0,1]{DPP}')
        A(f'    s_add_u32 s{sKo}, s{sKo}, {STEP}')
        A(f'    ds_write_b32 v{vLds}, v{vw} offset:{256*b}')
        A(f'    v_max_f32 v{vmx}, v{vmx}, v{vw}')
    A(f'    v_add_u32 v{vLds}, {256*NBUF}, v{vLds}')
    A(f'    s_sub_u32 s{sCnt}, s{sCnt}, 1')
    A(f'    s_cmp_lg_u32 s{sCnt}, 0')
    A('    s_cbranch_scc1 L_kloop')
    A(f'    v_max_f32_dpp v{vmx}, v{vmx}, v{vmx} row_ror:4{DPP}')
    A(f'    s_mov_b32 s{sCnt}, {GPH // NBUF}')
    A('    s_nop 0')
    A(f'    v_max_f32_dpp v{vmx}, v{vmx}, v{vmx} row_ror:8{DPP}')
    A(f'    v_mov_b32 v{vx}, v{vmx}')
    A('    s_nop 1')
    A(f'    v_permlane32_swap_b32 v{vx}, v{vmx}')
    A('    s_nop 1')
    A(f'    v_max_f32 v{vmx}, v{vx}, v{vmx}')
    A(f'    v_mov_b32 v{vx}, v{vmx}')
    A('    s_nop 1')
    A(f'    v_permlane16_swap_b32 v{vx}, v{vmx}')
    A('    s_nop 1')
    A(f'    v_max_f32 v{vmx}, v{vx}, v{vmx}')
    A(f'    v_mul_f32 v{vM+1}, s33, v{vmx}')
    A(f'    s_cmp_lg_u32 s{sHead}, 0')
    A('    s_cbranch_scc1 L_vstart')
    A(f'    s_mov_b32 s{sHead}, 1')
    A(f'    v_mov_b32 v{vM}, v{vM+1}')
    A(f'    v_mov_b32 v{vmx}, 0xff800000')
    for e in range(4):
        A(f'    v_mov_b32 v{vq+e}, v{vq+4+e}')
    A('    s_branch L_kloop')
    A('; ---------------- phase 2: p.V')
    A('L_vstart:')
    if taile is not None:
        A('    s_getreg_b32 s58, hwreg(HW_REG_XCC_ID)')
        A(f'    s_mov_b32 s59, {REG - taile * STEP}')
        A('    s_bitcmp1_b32 s58, 0')
        A(f'    s_cselect_b32 s58, {REG - tail * STEP}, s59')
    inv[0] = True
    if free: A(f'    s_mov_b32 s59, {REG - (free - 1) * STEP}')
    A(f'    v_subrev_u32 v{vLds}, {SCW}, v{vLds}')
    A(f'    s_mov_b32 s{sHead}, 0')
    A(f'    ds_read_b32 v{vsc}, v{vLds}')
    A('L_vhead:')
    A(f'    v_sub_f32 v{vneg}, 0, v{vM}')
    for e in range(4 if mfma else 8):
        A(f'    v_mov_b32 v{vacc+e}, 0')
    A(f'    v_mov_b32 v{vl}, 0')
    A('L_vloop:')
    A(f'    s_cmp_ge_u32 s{sKo}, {REG - tail * STEP}' if taile is None else f'    s_cmp_ge_u32 s{sKo}, s58')
    A(f'    s_cselect_b32 s{sTl}, -1, 0')
    itbase()
    src_lane = [0, 8, 4, 12]
    for b in range(NBUF):
        A('    s_waitcnt lgkmcnt(0)')
        A(f'    v_cmp_ne_u32 vcc, s{sTl}, v{vfl}')
        A(f'    v_fma_f32 v{vp}, v{vsc+b}, s33, v{vneg}')
        prog()
        A(f'    ds_read_b32 v{vsc + (b+1) % NBUF}, v{vLds} offset:{256*(b+1)}')
        if b % 2 == 0: A(f'    ds_read_b32 v{vfl}, v{vcb} offset:{FLAG}')
        A(f'    v_exp_f32 v{vp}, v{vp}')
        A(f'    s_add_u32 s{sPh}, s{sBs}, {U(b)}')
        if mfma:
            A(f'    v_cvt_pk_bf16_f32 v{vH}, v{vp}, v{vp}')
            A(f'    v_and_b32 v{vp}, s34, v{vH}')
            A(f'    v_add_f32 v{vl}, v{vl}, v{vp}')
            for i in range(4):
                a0 = vtmp + 4 * (i & 1)
                for w in range(4):
                    A(f'    v_and_b32_dpp v{a0+w}, v{vH}, v{vmask+w} row_newbcast:{src_lane[i]}{DPP}')
                A(f'    s_waitcnt vmcnt({4*NBUF-1})')
                A('    s_nop 0')
                A(f'    v_mfma_f32_16x16x32_bf16 v[{vacc}:{vacc+3}], v[{a0}:{a0+3}], v[{B(b,i)}:{B(b,i)+3}], v[{vacc}:{vacc+3}]')
                ld(b, i, sPh)
        else:
            for i in range(4):
                A(f'    s_waitcnt vmcnt({4*NBUF-1})')
                for w in range(4):
                    A(f'    v_lshlrev_b32 v{vtmp+2*w}, 16, v{B(b,i)+w}')
                    A(f'    v_and_b32 v{vtmp+2*w+1}, s34, v{B(b,i)+w}')
                ld(b, i, sPh)
                for e in range(8):
                    A(f'    v_fmac_f32_dpp v{vacc+e}, v{vp}, v{vtmp+e} row_newbcast:{src_lane[i]}{DPP}')
            A(f'    v_add_f32 v{vl}, v{vl}, v{vp}')
        A(f'    s_add_u32 s{sKo}, s{sKo}, {STEP}')
    A(f'    v_add_u32 v{vLds}, {256*NBUF}, v{vLds}')
    A(f'    s_sub_u32 s{sCnt}, s{sCnt}, 1')
    A(f'    s_cmp_lg_u32 s{sCnt}, 0')
    A('    s_cbranch_scc1 L_vloop')
    A(f'    s_mul_i32 s63, s{sHead}, {SL}')
    A(f'    s_add_u32 s63, s63, {SC}')
    if mfma:
        A(f'    v_add_f32_dpp v{vl}, v{vl}, v{vl} row_ror:4{DPP}')
        A('    s_lshl_b32 s64, s3, 9')
        A('    s_add_u32 s64, s64, s63')
        A(f'    v_add_f32_dpp v{vl}, v{vl}, v{vl} row_ror:8{DPP}')
        A(f'    v_add_u32 v4, s64, v{vAo}')
        A(f'    v_mov_b32 v{vx}, v{vl}')
        A('    s_mov_b32 exec_hi, 0')
        A(f'    ds_write_b128 v4, v[{vacc}:{vacc+3}]')
        A('    s_mov_b32 exec_hi, -1')
        A(f'    v_permlane32_swap_b32 v{vl}, v{vx}')
        A('    s_lshl_b32 s64, s3, 3')
        A('    s_add_u32 s64, s64, s63')
        A(f'    v_add_f32 v{vl}, v{vl}, v{vx}')
        A(f'    v_mov_b32 v{vx}, v{vl}')
        A('    v_mov_b32 v5, s64')
        A(f'    v_mov_b32 v{vmn}, v{vM}')
        A(f'    v_permlane16_swap_b32 v{vl}, v{vx}')
        A(f'    s_lshl_b32 s65, s{sHead}, 2')
        A(f'    v_add_u32 v6, s65, v{vcb}')
        A(f'    v_add_f32 v{vmn+1}, v{vl}, v{vx}')
        A(f'    ds_write_b64 v5, v[{vmn}:{vmn+1}] offset:{MLO}')
    else:
        A(f'    v_add_f32_dpp v{vl}, v{vl}, v{vl} row_ror:4{DPP}')
        for k in range(4):
            A(f'    v_permlane32_swap_b32 v{vacc+k}, v{vacc+k+4}')
        A(f'    v_add_f32_dpp v{vl}, v{vl}, v{vl} row_ror:8{DPP}')
        A('    s_lshl_b32 s64, s3, 9')
        A('    s_add_u32 s64, s64, s63')
        for k in range(4):
            A(f'    v_add_f32 v{vacc+k}, v{vacc+k}, v{vacc+k+4}')
        A(f'    v_mov_b32 v{vx}, v{vl}')
        A(f'    v_add_u32 v4, s64, v{vL8}')
        A('    s_lshl_b32 s64, s3, 3')
        A(f'    v_permlane16_swap_b32 v{vacc}, v{vacc+2}')
        A(f'    v_permlane16_swap_b32 v{vacc+1}, v{vacc+3}')
        A(f'    v_permlane32_swap_b32 v{vl}, v{vx}')
        A('    s_add_u32 s64, s64, s63')
        A('    v_mov_b32 v5, s64')
        A(f'    v_add_f32 v{vacc}, v{vacc}, v{vacc+2}')
        A(f'    v_add_f32 v{vacc+1}, v{vacc+1}, v{vacc+3}')
        A(f'    v_add_f32 v{vl}, v{vl}, v{vx}')
        A(f'    ds_write_b64 v4, v[{vacc}:{vacc+1}]             ; dims 8*(lane%16) + 2*(lane/16), +1')
        A(f'    v_mov_b32 v{vx}, v{vl}')
        A(f'    v_mov_b32 v{vmn}, v{vM}')
        A(f'    s_lshl_b32 s65, s{sHead}, 2')
        A(f'    v_permlane16_swap_b32 v{vl}, v{vx}')
        A(f'    v_add_u32 v6, s65, v{vcb}')
        A('    s_nop 0')
        A(f'    v_add_f32 v{vmn+1}, v{vl}, v{vx}')
        A(f'    ds_write_b64 v5, v[{vmn}:{vmn+1}] offset:{MLO}')
    A('    s_waitcnt lgkmcnt(0)')
    A('    s_mov_b64 exec, 1')
    A(f'    ds_add_rtn_u32 v7, v6, v{vone} offset:{CNT}')
    A('    s_mov_b64 exec, -1')
    A(f'    v_add_u32 v4, s63, v{vL8}')
    A('    v_mov_b32 v5, s63')
    A('    s_waitcnt lgkmcnt(0)')
    A('    v_readfirstlane_b32 s66, v7')
    A(f'    s_cmp_lg_u32 s66, {W-1}')
    A('    s_cbranch_scc1 L_head_ret')
    for e2 in range(W // 2):
        A(f'    ds_read_b128 v[{vml+4*e2}:{vml+4*e2+3}], v5 offset:{MLO+16*e2}')
    for e in range(W):
        A(f'    ds_read_b64 v[{vdat+2*e}:{vdat+2*e+1}], v4 offset:{512*e}')
    A(f'    s_waitcnt lgkmcnt({W})')
    A(f'    v_max_f32 v{vmn}, v{vml}, v{vml+2}')
    A(f'    v_max3_f32 v{vmn}, v{vmn}, v{vml+4}, v{vml+6}')
    for e in range(W):
        A(f'    v_sub_f32 v{vml+2*e}, v{vml+2*e}, v{vmn}')
    for e in range(W):
        A(f'    v_exp_f32 v{vml+2*e}, v{vml+2*e}')
    A(f'    s_mul_i32 s64, s{sHead}, s55')
    A(f'    v_mul_f32 v{vl}, v{vml}, v{vml+1}')
    for e in range(1, W):
        A(f'    v_fmac_f32 v{vl}, v{vml+2*e}, v{vml+2*e+1}')
    A(f'    v_rcp_f32 v{vx}, v{vl}')
    A('    s_waitcnt lgkmcnt(0)')
    A(f'    v_mul_f32 v{vt}, v{vml}, v{vdat}')
    A(f'    v_mul_f32 v{vt+1}, v{vml}, v{vdat+1}')
    for e in range(1, W):
        A(f'    v_fmac_f32 v{vt}, v{vml+2*e}, v{vdat+2*e}')
        A(f'    v_fmac_f32 v{vt+1}, v{vml+2*e}, v{vdat+2*e+1}')
    A(f'    v_mul_f32 v{vt}, v{vt}, v{vx}')
    A(f'    v_mul_f32 v{vt+1}, v{vt+1}, v{vx}')
    A(f'    v_cvt_pk_bf16_f32 v7, v{vt}, v{vt+1}')
    A(f'    buffer_store_dword v7, v{vOut}, s[24:27], s64 offen')
    if diag:
        A('    s_memrealtime s[68:69]')
        A('    s_getreg_b32 s62, hwreg(HW_REG_XCC_ID)')
        A(f'    ds_read_b32 v{vml+3}, v{vcb} offset:{FLAG+4}')
        A('    s_waitcnt lgkmcnt(0)')
        A('    s_or_b32 s62, s62, 0x100')
        A(f'    v_mov_b32 v{vml}, s70')
        A(f'    v_mov_b32 v{vml+1}, s62')
        A(f'    v_mov_b32 v{vml+2}, s68')
        A('    v_mov_b32 v6, 0')
        A('    s_lshl_b32 s64, s2, 5')
        A(f'    s_lshl_b32 s65, s{sHead}, 4')
        A('    s_add_u32 s64, s64, s65')
        A(f'    s_add_u32 s64, s64, {WS_DIAG}')
        A('    s_mov_b64 exec, 1')
        A(f'    buffer_store_dwordx4 v[{vml}:{vml+3}], v6, s[28:31], s64 offen')
        A('    s_mov_b64 exec, -1')
    A('L_head_ret:')
    A(f'    s_cmp_lg_u32 s{sHead}, 0')
    A('    s_cbranch_scc1 L_end')
    A(f'    s_mov_b32 s{sHead}, 1')
    A(f'    s_mov_b32 s{sCnt}, {GPH // NBUF}')
    A(f'    v_mov_b32 v{vM}, v{vM+1}')
    A('    s_branch L_vhead')
    A('L_control:')
    A('    s_load_dwordx2 s[36:37], s[0:1], 32     ; debug')
    A(f'    v_mov_b32 v{vcb}, {SC}')
    for r in (8, 9, 10, 11): A(f'    v_mov_b32 v{r}, 0')
    A(f'    ds_write_b128 v{vcb}, v[8:11] offset:{CNT}')
    A(f'    ds_write_b128 v{vcb}, v[8:11] offset:{PROG}')
    A('    v_lshlrev_b32 v12, 2, v5')
    A('    s_lshr_b32 s60, s2, 3')
    A('    s_lshl_b32 s60, s60, 2')
    A('    s_mov_b32 s42, 128')
    A('    s_mov_b32 s43, 0x00020000')
    A('    s_waitcnt lgkmcnt(0)')
    A('    s_mov_b32 s40, s36')
    A('    s_and_b32 s41, s37, 0xffff')
    A('    s_barrier')
    def pollloop(lbl, poll, th, share, lim):
        A(f'{lbl}:')
        A(f'    s_sleep {poll}')
        A(f'    ds_read_b32 v10, v{vcb} offset:{PROG}')
        A(f'    buffer_load_dword v9, v12, s[40:43], 0 offen {fpol}')
        A('    s_waitcnt lgkmcnt(0)')
        A('    s_mov_b64 exec, 1')
        A('    buffer_store_dword v10, v8, s[40:43], s60 offen')
        A('    s_mov_b64 exec, -1')
        A(f'    v_add_u32 v11, {th}, v10' if th >= 0 else f'    v_subrev_u32 v11, {-th}, v10')
        A('    v_readfirstlane_b32 s62, v10')
        A('    s_waitcnt vmcnt(1)')
        A('    v_cmp_gt_u32 vcc, v9, v11')
        A('    v_cmp_ne_u32 s[64:65], 0, v9')
        A('    s_bcnt1_i32_b64 s66, vcc')
        A('    s_bcnt1_i32_b64 s67, s[64:65]')
        A('    s_lshl_b32 s66, s66, 4')
        A(f'    s_mul_i32 s67, s67, {share}')
        A('    s_cmp_gt_u32 s66, s67')
        A('    s_cselect_b32 s66, 1, 0')
        A('    v_mov_b32 v11, s66')
        A(f'    ds_write_b32 v{vcb}, v11 offset:{FLAG}')
        if diag:
            A('    v_lshlrev_b32 v11, 16, v11')
            A('    v_add_u32 v11, 1, v11')
            A('    s_mov_b64 exec, 1')
            A(f'    ds_add_u32 v{vcb}, v11 offset:{FLAG+4}')
            A('    s_mov_b64 exec, -1')
        A(f'    s_cmp_lt_u32 s62, {lim}')
        A(f'    s_cbranch_scc1 {lbl}')
    pollloop('L_poll', poll, th, share, p2 if p2 else pend)
    if p2: A('; last quarter: tighter tracking')
    if p2: pollloop('L_poll2', poll2, th2, share2, pend)
    A('L_end:')
    A('    s_endpgm')
    A('.section .rodata,"a"')
    A('.p2align 6')
    A(f'.amdhsa_kernel {NAME}')
    A(f'  .amdhsa_next_free_vgpr {nv}')
    A('  .amdhsa_next_free_sgpr 80')
    A(f'  .amdhsa_accum_offset {(nv + 3) // 4 * 4}')
    A('  .amdhsa_group_segment_fixed_size 0')
    A('  .amdhsa_kernarg_size 48')
    A('  .amdhsa_user_sgpr_count 2')
    A('  .amdhsa_user_sgpr_kernarg_segment_ptr 1')
    A('  .amdhsa_system_sgpr_workgroup_id_x 1')
    A('  .amdhsa_float_denorm_mode_32 3')
    A('.end_amdhsa_kernel')
    return '\n'.join(L) + '\n'

if __name__ == '__main__':
    ap = argparse.ArgumentParser()
    ap.add_argument('out')
    for n, d in (('win', 5), ('prowin', 8), ('tail', 4), ('rotbit', 0), ('hx', 0), ('th', 4), ('share', 5), ('poll', 32), ('hiwin', 8), ('p2', 380), ('th2', 0), ('share2', 5), ('poll2', 8), ('pend', 472), ('taile', -1), ('eper', 0), ('oper', 0), ('free', 1)):
        ap.add_argument('--' + n, type=int, default=d)
    ap.add_argument('--perm', default='12,13,15,16,17,18,14')
    ap.add_argument('--fpol', default='sc0')
    ap.add_argument('--up', default='')
    ap.add_argument('--dn', default='')
    for n in ('half', 'diag', 'nomfma'):
        ap.add_argument('--' + n, action='store_true')
    a = ap.parse_args()
    open(a.out, 'w').write(gen(a.win, a.prowin, a.tail, [int(x) for x in a.perm.split(',')], a.rotbit if a.rotbit >= 0 else None,
                               a.hx, a.half, a.th, a.share, a.poll, a.fpol, a.diag, [int(x) for x in a.up.split(',') if x], [int(x) for x in a.dn.split(',') if x], a.hiwin, a.p2, a.th2, a.share2, a.poll2, a.pend, a.taile if a.taile >= 0 else None, a.eper, a.oper, a.free, not a.nomfma))
```
